```python
import torch

def _softmax(x, axis=-1):
    return torch.softmax(x, dim=axis)

def _gelu(x):
    return torch.nn.functional.gelu(x, approximate='tanh')

def _silu(x):
    return torch.nn.functional.silu(x)

def _sigmoid(x):
    return torch.sigmoid(x)

def _layernorm(x, axis=-1, eps=1e-05):
    m = x.mean(dim=axis, keepdim=True)
    v = x.var(dim=axis, keepdim=True, unbiased=False)
    return (x - m) / torch.sqrt(v + eps)

def _scatter_add(tgt, idx, src, axis=0):
    return tgt.clone().index_add_(axis, idx, src)

def _segment_sum(src, seg, n):
    out = torch.zeros((n,) + src.shape[1:], dtype=src.dtype)
    return out.index_add_(0, seg, src)

def _pad(x, pw):
    flat = tuple((v for pair in reversed(pw) for v in pair))
    return torch.nn.functional.pad(x, flat)
kernel_name = 'adaLN_cond__sliding_block__dense_activation_silu__prompt'

def setup_inputs():

    _w = lambda a: (lambda t: t.to(torch.bfloat16) if t.is_floating_point() else t)(torch.as_tensor(a))

    def _A_setup():
        B, S, D = (1, 2048, 512)
        return {'x': _w((lambda *s: torch.randn(*s, dtype=torch.bfloat16) * 0.05)(B, S, D)), 'wqkv': _w((lambda *s: torch.randn(*s, dtype=torch.bfloat16) * 0.05)(D, 3 * D)), 'wo': _w((lambda *s: torch.randn(*s, dtype=torch.bfloat16) * 0.05)(D, D))}
    _A_in = _A_setup()

    def _B_setup():
        B, S, D, F = (1, 2048, 512, 1376)
        return {'x': _w((lambda *s: torch.randn(*s, dtype=torch.bfloat16) * 0.05)(B, S, D)), 'w1': _w((lambda *s: torch.randn(*s, dtype=torch.bfloat16) * 3.2)(D, F) * D ** (-0.5)), 'w2': _w((lambda *s: torch.randn(*s, dtype=torch.bfloat16) * 0.4)(F, D) * F ** (-0.5))}
    _B_in = _B_setup()
    return {'A_x': _A_in['x'], 'A_wqkv': _A_in['wqkv'], 'A_wo': _A_in['wo'], 'B_x': _B_in['x'], 'B_w1': _B_in['w1'], 'B_w2': _B_in['w2'], 'c': _w((lambda *s: torch.randn(*s, dtype=torch.bfloat16) * 0.1)(1, 512) * 8.0), 'w_mod': _w((lambda *s: torch.randn(*s, dtype=torch.bfloat16) * 0.1)(512, 6 * 512) * 512 ** (-0.5) * 8.0)}

def reference(A_x, A_wqkv, A_wo, B_x, B_w1, B_w2, c, w_mod):

    def _A_ref(x, wqkv, wo):
        B, S, D = x.shape
        H = 32
        Dh = D // H
        W = 256
        qkv = (lambda x, *d: x.permute(*d))((x @ wqkv).reshape(B, S, 3, H, Dh), 2, 0, 3, 1, 4)
        q, k, v = (qkv[0], qkv[1], qkv[2])
        scores = torch.einsum('bhqd,bhkd->bhqk', q, k) * Dh ** (-0.5)
        idx = torch.arange(S)
        mask = (idx[:, None] - idx[None, :] >= 0) & (idx[:, None] - idx[None, :] < W)
        scores = torch.where(mask[None, None], scores, -1000000000.0)
        p = _softmax(scores, axis=-1)
        o = torch.einsum('bhqk,bhkd->bhqd', p, v)
        return (lambda x, *d: x.permute(*d))(o, 0, 2, 1, 3).reshape(B, S, D) @ wo

    def _B_ref(x, w1, w2):
        h = torch.einsum('bsd,df->bsf', x, w1)
        h = _silu(h)
        out = torch.einsum('bsf,fd->bsd', h, w2)
        return out
    x = A_x
    mod = (_silu(c) @ w_mod).reshape(c.shape[0], 6, 1, -1)
    sa, ca, ga, sb, cb, gb = (mod[:, 0].clone(), mod[:, 1].clone(), mod[:, 2].clone(), mod[:, 3].clone(), mod[:, 4].clone(), mod[:, 5].clone())
    h = _layernorm(x, axis=-1) * (1 + ca) + sa
    x = x + ga * _A_ref(h, A_wqkv, A_wo)
    h = _layernorm(x, axis=-1) * (1 + cb) + sb
    x = x + gb * _B_ref(h, B_w1, B_w2)
    return x
```

```python
import re

TRANS = ("v_exp_f32", "v_log_f32", "v_rcp_f32", "v_rsq_f32", "v_sqrt_f32", "v_sin_f32", "v_cos_f32")
_RANGE = re.compile(r"^([vas])\[(\d+):(\d+)\]$")
_SINGLE = re.compile(r"^([vas])(\d+)$")


def regs_of(op):
    op = op.strip()
    if op.startswith("-"):
        op = op[1:]
    if op.startswith("abs(") and op.endswith(")"):
        op = op[4:-1]
    if op.startswith("|") and op.endswith("|"):
        op = op[1:-1]
    m = _RANGE.match(op)
    if m:
        return [m.group(1) + str(i) for i in range(int(m.group(2)), int(m.group(3)) + 1)]
    m = _SINGLE.match(op)
    if m:
        return [op]
    if op in ("vcc", "vcc_lo", "vcc_hi"):
        return ["vcc"]
    if op in ("exec", "exec_lo", "exec_hi"):
        return ["exec"]
    if op == "m0":
        return ["m0"]
    return []


def split_ops(rest):
    ops, depth, cur = [], 0, ""
    for ch in rest:
        if ch in "[(":
            depth += 1
        if ch in "])":
            depth -= 1
        if ch == "," and depth == 0:
            ops.append(cur.strip())
            cur = ""
        else:
            cur += ch
    if cur.strip():
        ops.append(cur.strip())
    mods = ""
    if ops:
        last = ops[-1]
        depth = 0
        for i, ch in enumerate(last):
            if ch in "[(":
                depth += 1
            if ch in "])":
                depth -= 1
            if ch == " " and depth == 0:
                ops[-1], mods = last[:i], last[i + 1:]
                break
    return ops, mods


class Inst:
    __slots__ = ("text", "mn", "kind", "defs", "uses", "passes", "srcc", "srcab", "dpp_reads", "lane_reads",
                 "perm", "wide", "tag", "opt", "dma", "dot", "states", "sdwa", "note", "alt")

    def __init__(self, text, tag=None):
        self.text = text
        self.tag = tag
        self.opt = False
        self.alt = False
        self.note = None
        self.defs, self.uses = set(), set()
        self.passes = 0
        self.srcc, self.srcab, self.dpp_reads, self.lane_reads, self.wide = set(), set(), set(), set(), set()
        self.perm = self.dma = self.dot = self.sdwa = False
        self.states = 1
        t = text.split(";")[0].strip()
        if t.endswith(":"):
            self.mn, self.kind, self.states = t, "label", 0
            return
        if t.startswith(".") or not t:
            self.mn, self.kind, self.states = t, "dir", 0
            return
        sp = t.split(None, 1)
        mn = self.mn = sp[0]
        ops, mods = split_ops(sp[1]) if len(sp) > 1 else ([], "")
        R = [regs_of(o) for o in ops]
        allr = lambda l: set(r for x in l for r in x)
        base = re.sub(r"_(e32|e64|dpp|sdwa)$", "", mn)
        if mn.startswith("v_mfma"):
            self.kind = "mfma"
            self.passes = 8 if "32x32" in mn else 4
            self.defs = set(R[0])
            self.srcab = set(R[1]) | set(R[2])
            self.srcc = set(R[3])
            self.uses = self.srcab | self.srcc
        elif mn.startswith("v_"):
            self.kind = "trans" if base in TRANS else "valu"
            if base.startswith("v_cmp"):
                assert not base.startswith("v_cmpx")
                self.defs, self.uses = set(R[0]), allr(R[1:])
            elif base in ("v_readfirstlane_b32", "v_readlane_b32"):
                self.defs, self.uses = set(R[0]), allr(R[1:])
                self.lane_reads = set(R[1])
            elif base.startswith("v_permlane"):
                self.defs = self.uses = allr(R[:2])
                self.perm = True
            elif base in ("v_add_co_u32", "v_sub_co_u32", "v_addc_co_u32"):
                self.defs, self.uses = allr(R[:2]), allr(R[2:])
            else:
                self.defs, self.uses = set(R[0]), allr(R[1:])
                if base.startswith("v_fmac") or base.startswith("v_dot2c") or base.startswith("v_writelane"):
                    self.uses |= self.defs
            if mn.endswith("_dpp") or "row_" in mods or "quad_perm" in mods:
                self.dpp_reads = set(R[1])
            if mn.endswith("_sdwa"):
                self.sdwa = True
            if base.startswith("v_dot"):
                self.dot = True
        elif mn.startswith("ds_"):
            self.kind = "ds"
            if mn.startswith("ds_read"):
                self.defs, self.uses = set(R[0]), allr(R[1:])
            else:
                self.uses = allr(R)
        elif mn.startswith("buffer_") or mn.startswith("global_"):
            self.kind = "vmem"
            m = mods.split()
            if mn in ("buffer_wbl2", "buffer_inv"):
                pass
            elif "_load" in mn and "lds" in m:
                self.dma = True
                self.uses = allr(R) | {"m0"}
            elif "_load" in mn:
                self.defs, self.uses = set(R[0]), allr(R[1:])
            else:
                self.uses = allr(R)
                if mn.endswith("x4") or mn.endswith("x3"):
                    self.wide = set(R[0] if mn.startswith("buffer_") else R[1])
        elif mn.startswith("s_load") or mn in ("s_memtime", "s_memrealtime"):
            self.kind = "smem"
            self.defs, self.uses = set(R[0]), allr(R[1:])
        elif mn == "s_waitcnt":
            self.kind = "wait"
        elif mn == "s_nop":
            self.kind = "nop"
            self.states = int(ops[0]) + 1
        elif mn == "s_barrier":
            self.kind = "barrier"
        elif mn.startswith("s_cbranch") or mn in ("s_branch", "s_endpgm"):
            self.kind = "branch"
            if "vcc" in mn:
                self.uses = {"vcc"}
        elif mn.startswith("s_"):
            self.kind = "salu"
            if mn.startswith("s_cmp") or mn.startswith("s_bitcmp") or mn in ("s_sleep", "s_setprio"):
                self.uses = allr(R)
            elif "saveexec" in mn:
                self.defs, self.uses = set(R[0]) | {"exec"}, allr(R[1:]) | {"exec"}
            elif mn == "s_getreg_b32" or mn == "s_getpc_b64":
                self.defs = set(R[0])
            else:
                self.defs, self.uses = set(R[0]), allr(R[1:])
                if mn in ("s_addk_i32", "s_mulk_i32"):
                    self.uses |= self.defs
        else:
            raise ValueError("unknown instruction: " + text)

    @property
    def is_valu(self):
        return self.kind in ("valu", "trans")

    def cost(self):
        if self.kind in ("label", "dir", "mark"):
            return 0
        if self.kind in ("trans", "mfma"):
            return 8
        if self.kind == "nop":
            return 4 * self.states
        return 4


class Pseudo(Inst):
    __slots__ = ("what", "arg")

    def __init__(self, what, arg=None):
        Inst.__init__(self, "")
        self.kind = "mark"
        self.what, self.arg = what, arg
        self.states = 0


def isv(r):
    return r[0] in "va" and r not in ("vcc",)


def need_states(prev, cur):
    n = 0
    pk, ck = prev.kind, cur.kind
    if prev.is_valu:
        vd = {r for r in prev.defs if isv(r)}
        sd = prev.defs - vd
        if vd:
            if ck == "mfma" and vd & cur.uses:
                n = max(n, 2)
            if vd & cur.lane_reads:
                n = max(n, 1)
            if vd & cur.dpp_reads:
                n = max(n, 2)
            if cur.perm and vd & cur.uses:
                n = max(n, 2)
            if pk == "trans" and ck != "trans" and vd & cur.uses:
                n = max(n, 1)
            if prev.sdwa and vd & (cur.uses | cur.defs):
                n = max(n, 1)
            if prev.dot and vd & (cur.uses | cur.defs):
                same_c = cur.dot and cur.mn == prev.mn and vd == cur.defs
                if not same_c:
                    n = max(n, 3)
        if sd:
            if ck == "vmem" and sd & cur.uses:
                n = max(n, 5)
            if cur.is_valu and sd & cur.uses:
                n = max(n, 4 if cur.lane_reads else 2)
            if ck in ("salu", "branch", "smem") and sd & cur.uses:
                n = max(n, 1)
    if pk == "mfma":
        big = 12 if prev.passes == 8 else 8
        if ck == "mfma":
            if prev.defs & cur.srcab:
                n = max(n, big)
            if prev.defs & cur.srcc:
                if not (prev.defs == cur.srcc and prev.passes == cur.passes):
                    n = max(n, big - 2)
            if prev.defs & cur.defs and prev.passes != cur.passes:
                n = max(n, big)
        elif cur.is_valu or ck in ("vmem", "ds"):
            if prev.defs & (cur.uses | cur.defs):
                n = max(n, big)
            if cur.is_valu and prev.srcc & cur.defs:
                n = max(n, 7 if prev.passes == 8 else 3)
    if prev.wide and prev.wide & cur.defs:
        n = max(n, 2 if cur.is_valu else 1)
    if pk == "salu" and "m0" in prev.defs and cur.dma:
        n = max(n, 1)
    return n


class Prog:
    def __init__(self):
        self.ins = []
        self.tail = []
        self.opt = False
        self.nlab = 0

    def lab(self, stem):
        self.nlab += 1
        return f"L_{stem}_{self.nlab}"

    def add(self, inst):
        if self.opt:
            inst.opt = self.opt
        self.ins.append(inst)
        return inst

    def __call__(self, text, tag=None):
        for line in text.split("\n"):
            line = line.strip()
            if line:
                self.add(Inst(line, tag))

    def wait_vm(self, *tags):
        self.add(Pseudo("vm", set(tags)))

    def wait_lgkm(self, *tags):
        self.add(Pseudo("lgkm", set(tags)))

    def drain_lgkm(self):
        self.add(Pseudo("lgkm_all"))

    def drain_vm(self):
        self.add(Pseudo("vm_all"))

    def mark(self, name):
        self.add(Pseudo("mark", name))

    def alt_begin(self):
        self.add(Pseudo("alt_begin"))

    def alt_end(self):
        self.add(Pseudo("alt_end"))

    def reset_state(self):
        self.add(Pseudo("reset"))

    def barrier(self):
        self.drain_lgkm()
        self("s_barrier")

    def finalize(self, verbose=False):
        out = []
        vmq, lgq = [], []

        def emit_wait(vm=None, lg=None):
            parts = []
            if vm is not None:
                parts.append(f"vmcnt({min(vm, 63)})")
            if lg is not None:
                parts.append(f"lgkmcnt({min(lg, 15)})")
            w = Inst("s_waitcnt " + " ".join(parts))
            if out and out[-1].kind == "wait" and getattr(out[-1], "note", None) == "auto" and out[-1].opt == cur_opt[0] and not out[-1].alt:
                old = dict(re.findall(r"(\w+cnt)\((\d+)\)", out[-1].text))
                new = dict(re.findall(r"(\w+cnt)\((\d+)\)", w.text))
                for k2, v2 in new.items():
                    old[k2] = str(min(int(v2), int(old.get(k2, 99))))
                w = Inst("s_waitcnt " + " ".join(f"{k2}({v2})" for k2, v2 in old.items()))
                out.pop()
            w.note = "auto"
            w.opt = cur_opt[0]
            out.append(w)

        def retire(q, idx):
            n = sum(1 for e in q[idx + 1:] if (not e.opt) or e.opt == cur_opt[0])
            return n

        cur_opt = [False]

        def do_vm(idx):
            n = retire(vmq, idx)
            emit_wait(vm=n)
            if not cur_opt[0]:
                del vmq[:idx + 1]
            else:
                done_in_opt["vm"] = max(done_in_opt["vm"], idx + 1)

        def do_lg(idx):
            if any(e.kind == "smem" for e in lgq):
                emit_wait(lg=0)
                idx = len(lgq) - 1
            else:
                emit_wait(lg=retire(lgq, idx))
            if not cur_opt[0]:
                del lgq[:idx + 1]
            else:
                done_in_opt["lg"] = max(done_in_opt["lg"], idx + 1)

        done_in_opt = {"vm": 0, "lg": 0}
        for inst in self.ins:
            if inst.opt != cur_opt[0]:
                if cur_opt[0]:
                    vmq[:] = [e for i, e in enumerate(vmq) if not (e.opt == cur_opt[0] and i < done_in_opt["vm"])]
                    lgq[:] = [e for i, e in enumerate(lgq) if not (e.opt == cur_opt[0] and i < done_in_opt["lg"])]
                done_in_opt = {"vm": 0, "lg": 0}
                cur_opt[0] = inst.opt
            lo_vm = done_in_opt["vm"] if cur_opt[0] else 0
            lo_lg = done_in_opt["lg"] if cur_opt[0] else 0
            if isinstance(inst, Pseudo):
                if inst.what == "vm":
                    idx = [i for i, e in enumerate(vmq) if e.tag in inst.arg and i >= lo_vm]
                    if idx:
                        do_vm(idx[-1])
                elif inst.what == "lgkm":
                    idx = [i for i, e in enumerate(lgq) if e.tag in inst.arg and i >= lo_lg]
                    if idx:
                        do_lg(idx[-1])
                elif inst.what == "lgkm_all":
                    if len(lgq) > lo_lg:
                        do_lg(len(lgq) - 1)
                elif inst.what == "vm_all":
                    if len(vmq) > lo_vm:
                        do_vm(len(vmq) - 1)
                elif inst.what == "alt_begin":
                    saved = (list(vmq), list(lgq))
                    alt_first = len(out)
                elif inst.what == "alt_end":
                    vmq[:], lgq[:] = saved
                    for e in out[alt_first:]:
                        e.alt = True
                elif inst.what == "reset":
                    vmq.clear()
                    lgq.clear()
                else:
                    out.append(inst)
                continue
            touched = inst.uses | inst.defs
            if touched:
                idx = [i for i, e in enumerate(vmq) if i >= lo_vm and e.defs & touched]
                if idx:
                    do_vm(idx[-1])
                idx = [i for i, e in enumerate(lgq) if i >= lo_lg and e.defs & touched]
                if idx:
                    do_lg(idx[-1])
            if inst.kind == "wait":
                m = re.search(r"vmcnt\((\d+)\)", inst.text)
                if m and int(m.group(1)) == 0 and not cur_opt[0]:
                    vmq.clear()
                m = re.search(r"lgkmcnt\((\d+)\)", inst.text)
                if m and int(m.group(1)) == 0 and not cur_opt[0]:
                    lgq.clear()
            out.append(inst)
            if inst.kind == "vmem":
                vmq.append(inst)
            elif inst.kind in ("ds", "smem"):
                lgq.append(inst)
        res = []
        nops = 0
        for inst in out:
            if inst.states or inst.kind in ("valu", "trans", "mfma"):
                need = 0
                for skip_opt in (False, True):
                    d = 0
                    for p in reversed(res):
                        if d >= 14:
                            break
                        if skip_opt and ((p.opt and p.opt != inst.opt) or (p.alt and not inst.alt)):
                            continue
                        if p.kind in ("valu", "trans", "mfma", "vmem", "salu"):
                            need = max(need, need_states(p, inst) - d)
                        d += p.states
                if need > 0:
                    n = Inst(f"s_nop {need - 1}")
                    n.opt = inst.opt
                    n.alt = inst.alt
                    n.note = "hazard"
                    res.append(n)
                    nops += need
            res.append(inst)
        self.final = res
        self.nops = nops
        return res

    def timeline(self):
        t, mf = 0, 0
        r = []
        for i in self.final:
            if i.kind == "mark":
                r.append((i.arg, t))
            elif i.kind == "mfma":
                t = max(t, mf)
                mf = t + 4 * i.passes
                t += 8
            else:
                t += i.cost()
        r.append(("end", t))
        return r

    def text(self):
        lines = []
        for i in self.final:
            if i.kind == "mark":
                lines.append(f"; ---- {i.arg}")
            else:
                lines.append(i.text)
        return "\n".join(lines + self.tail)


def merge(fg, bg, pace, start=0):
    out, t, mf, nxt = [], 0, 0, start
    bg = list(bg)
    for i in fg:
        if bg and t >= nxt and i.kind not in ("label",) and not i.opt:
            atom = bg.pop(0)
            for b in atom:
                out.append(b)
                t += b.cost()
            nxt = max(nxt + pace, t - pace)
        out.append(i)
        if i.kind == "mfma":
            t = max(t, mf)
            mf = t + 4 * i.passes
            t += 8
        else:
            t += i.cost()
    return out, bg
```

```python
import sys
from asmgen import Prog, Inst, Pseudo, merge

NAME = "adaLN_cond__sliding_block__dense_activation_silu__prompt_kernel"

EPOCH, ARR, MODG = 0x0, 0x1000, 0x2000
OFL, YFL, HFL = 0x8000, 0xA000, 0xC000
STG = 0x10000
KFL, VFL = 0x60000, 0x80000
DBG = 0xA0000
KB, VB, OB, YB, HB = 0x100000, 0x300000, 0x500000, 0x700000, 0x900000
HSTR = 88 * 1024
WSZ = 0x1000000
OOB = WSZ
TAGC = 0x9E3779B9

L_MODB = 0
L_SIL = 6144
L_MRED = 8192
L_STP = 8192
L_ST = 9216
POOL = 10240
LDS_BYTES = 163840
L_H = POOL
L_S1 = POOL + 65536
L_S2 = POOL + 131072

SX, SWQ, SWO, SW1, SW2, SWS, SOUT, SMOD, SC = 4, 8, 12, 16, 20, 24, 28, 32, 36
SMASK = 40
sT, sW, sJ, sG, sHEAD, sSTRIP = 72, 73, 74, 75, 76, 77
sA, sB, sC_, sD, sE, sF = 78, 79, 80, 81, 82, 83
sCNT = 84
sHI = 85
srd = lambda n: f"s[{n}:{n + 3}]"
v = lambda a, n=1: f"v{a}" if n == 1 else f"v[{a}:{a + n - 1}]"
a_ = lambda a, n=1: f"a{a}" if n == 1 else f"a[{a}:{a + n - 1}]"
LOG2E = 1.4426950408889634


def f2u(x):
    import struct
    return struct.unpack("<I", struct.pack("<f", x))[0]


def hx(x):
    return hex(x & 0xFFFFFFFF)


M16 = "v_mfma_f32_16x16x32_bf16"
M32 = "v_mfma_f32_32x32x16_bf16"


class Gen:
    def __init__(self, upto=99, stamps=(), force_slow=False):
        self.k = Prog()
        self.upto = upto
        self.stamps = list(stamps)
        self.force_slow = force_slow
        self.slots = [86, 88, 90, 92, 94, 96, 98, 100]
        self.used_stamps = []

    def stamp(self, name):
        self.k.mark(name)
        if name in self.stamps and name not in self.used_stamps:
            s = self.slots[len(self.used_stamps)]
            self.used_stamps.append(name)
            self.k(f"s_memtime s[{s}:{s + 1}]")

    def capture(self, fn):
        k = self.k
        save = k.ins
        k.ins = []
        fn()
        r = k.ins
        k.ins = save
        return r

    def poll(self, loads, checks):
        k = self.k
        slow, ret = k.lab("poll"), k.lab("ret")
        self._cmp(checks, k)
        k(f"s_cbranch_vccnz {slow}")
        k(f"{ret}:")
        t = [f"{slow}:", f"s_mov_b32 s{sCNT}, 0", f"{slow}_l:", "s_sleep 1"] + loads + ["s_waitcnt vmcnt(0)"]
        p = Prog()
        self._cmp(checks, p)
        t += [i.text for i in p.finalize()]
        t += ["s_nop 1", f"s_cbranch_vccz {ret}", f"s_add_u32 s{sCNT}, s{sCNT}, 1", f"s_cmp_lt_u32 s{sCNT}, 0x40000",
              f"s_cbranch_scc1 {slow}_l", "s_endpgm"]
        k.tail += t

    def _cmp(self, checks, k):
        k(f"v_cmp_ne_u32 vcc, s{sT}, v{checks[0]}")
        for c in checks[1:]:
            k(f"v_cmp_ne_u32 s[0:1], s{sT}, v{c}")
            k("s_or_b64 vcc, vcc, s[0:1]")

    def unpack(self, dst, src, n):
        for q in range(n):
            self.k(f"v_lshlrev_b32 v{dst + 2 * q}, 16, v{src + q}")
            self.k(f"v_and_b32 v{dst + 2 * q + 1}, s{sHI}, v{src + q}")

    def p0(self):
        k = self.k
        k("s_cmp_ge_u32 s2, 256\ns_cbranch_scc1 L_end")
        k(f"s_load_dwordx2 s[{SC}:{SC + 1}], s[0:1], 48")
        k(f"s_load_dwordx2 s[{SMOD}:{SMOD + 1}], s[0:1], 56")
        k(f"s_load_dwordx2 s[{SX}:{SX + 1}], s[0:1], 0")
        k(f"s_load_dwordx2 s[{SWQ}:{SWQ + 1}], s[0:1], 8")
        k(f"s_load_dwordx2 s[{SWS}:{SWS + 1}], s[0:1], 80")
        self.stamp("start")
        k("v_lshrrev_b32 v1, 6, v0\nv_and_b32 v0, 63, v0")
        k(f"s_and_b32 s{sA}, s2, 7\ns_lshl_b32 s{sA}, s{sA}, 2\ns_lshr_b32 s{sG}, s2, 6\ns_add_u32 s{sG}, s{sG}, s{sA}")
        k(f"v_readfirstlane_b32 s{sW}, v1")
        k(f"s_bfe_u32 s{sJ}, s2, 0x30003")
        for r, n in ((SC, 1024), (SMOD, 3145728), (SX, 2097152), (SWQ, 1572864), (SWS, WSZ)):
            k(f"s_mov_b32 s{r + 2}, {hx(n)}\ns_mov_b32 s{r + 3}, 0x20000")
        k(f"s_mov_b32 s{sHI}, 0xffff0000")
        k(f"s_lshl_b32 s{sHEAD}, s{sJ}, 2\ns_add_u32 s{sHEAD}, s{sHEAD}, s{sW}")
        k(f"s_and_b32 s{sA}, s{sG}, 1\ns_lshl_b32 s{sA}, s{sA}, 4\ns_lshr_b32 s{sB}, s{sG}, 1\ns_add_u32 s{sA}, s{sA}, s{sB}")
        k(f"s_add_u32 s{sB}, s{sG}, 32\ns_cmp_eq_u32 s{sJ}, 4\ns_cselect_b32 s{sSTRIP}, s{sB}, 99")
        k(f"s_cmp_eq_u32 s{sJ}, 3\ns_cselect_b32 s{sSTRIP}, s{sA}, s{sSTRIP}")
        k("v_lshlrev_b32 v2, 4, v0\nv_lshrrev_b32 v3, 3, v0\nv_and_b32 v4, 7, v0")
        k("s_waitcnt lgkmcnt(0)")
        k(f"s_load_dword s{sT}, s[{SWS}:{SWS + 1}], {EPOCH}")
        k(f"s_load_dwordx2 s[{SWO}:{SWO + 1}], s[0:1], 16")
        k(f"s_load_dwordx2 s[{SW1}:{SW1 + 1}], s[0:1], 32")
        k(f"s_load_dwordx2 s[{SW2}:{SW2 + 1}], s[0:1], 40")
        k(f"s_load_dwordx2 s[{SOUT}:{SOUT + 1}], s[0:1], 64")
        k(f"s_cmp_ge_u32 s{sSTRIP}, 48\ns_cbranch_scc1 L_np0")
        k.opt = "prod"
        k(f"v_lshlrev_b32 v5, 2, v0\ns_lshl_b32 s{sA}, s{sW}, 8")
        k(f"buffer_load_dword v248, v5, {srd(SC)}, s{sA} offen")
        k(f"v_mul_u32_u24 v5, {16 * 6144}, v3\nv_lshl_add_u32 v5, v4, 4, v5")
        k(f"s_mul_i32 s{sA}, s{sW}, {128 * 6144}\ns_lshl_b32 s{sB}, s{sSTRIP}, 7\ns_add_u32 s{sA}, s{sA}, s{sB}")
        for i in range(16):
            k(f"buffer_load_dwordx4 {v(176 + 4 * i, 4)}, v5, {srd(SMOD)}, s{sA} offen")
            if i < 15:
                k(f"s_addk_i32 s{sA}, 6144")
        k.opt = False
        k("L_np0:")
        k(f"v_lshlrev_b32 v5, 7, v0\ns_lshl_b32 s{sA}, s{sG}, 16\ns_lshl_b32 s{sB}, s{sJ}, 13\ns_add_u32 s{sA}, s{sA}, s{sB}")
        k(f"s_cmp_eq_u32 s{sW}, 0\ns_cselect_b32 s{sA}, s{sA}, 0x1000000")
        k(f"buffer_load_dword v249, v5, {srd(SX)}, s{sA} offen", tag="touch")
        k(f"v_and_b32 v5, 15, v0\nv_mul_u32_u24 v5, 3072, v5\nv_lshrrev_b32 v6, 4, v0\nv_lshl_add_u32 v5, v6, 10, v5")
        k(f"v_cmp_gt_u32 vcc, 48, v0\nv_mov_b32 v6, 0x1000000\nv_cndmask_b32 v5, v6, v5, vcc")
        k(f"s_mul_i32 s{sA}, s{sG}, {16 * 3072}\ns_lshl_b32 s{sB}, s{sJ}, 7\ns_add_u32 s{sA}, s{sA}, s{sB}")
        k(f"s_cmp_eq_u32 s{sW}, 1\ns_cselect_b32 s{sA}, s{sA}, 0x1000000")
        k(f"buffer_load_dword v250, v5, {srd(SWQ)}, s{sA} offen", tag="touch")
        k(f"s_cmp_lg_u32 s{sW}, 2\ns_cbranch_scc1 L_nc")
        k.opt = "code"
        k(f"s_getpc_b64 s[{sE}:{sE + 1}]\nL_pc:")
        k(f"s_lshr_b32 s{sA}, s2, 3\ns_lshl_b32 s{sA}, s{sA}, 11\nv_and_b32 v5, 15, v0\nv_lshl_add_u32 v5, v5, 7, s{sA}")
        k("v_min_u32 v5, L_fastend-L_pc, v5")
        k(f"global_load_dword v251, v5, s[{sE}:{sE + 1}]", tag="touch")
        k.opt = False
        k("L_nc:")
        k(f"s_lshl_b32 s{sA}, s{sG}, 16\ns_lshl_b32 s{sB}, s{sW}, 14\ns_add_u32 s{sA}, s{sA}, s{sB}")
        for r in range(16):
            k(f"buffer_load_dwordx4 {v(16 + 8 * r + 4, 4)}, v2, {srd(SX)}, s{sA} offen offset:{(r & 3) * 1024}")
            if r & 3 == 3 and r < 15:
                k(f"s_addk_i32 s{sA}, 4096")
        k("v_bfe_u32 v5, v0, 4, 1\nv_lshrrev_b32 v6, 1, v4\nv_xor_b32 v5, v5, v6\nv_lshlrev_b32 v5, 5, v5")
        k("v_and_b32 v6, 1, v0\nv_lshl_add_u32 v5, v6, 4, v5\nv_mul_u32_u24 v6, 3072, v3\nv_add_u32 v8, v5, v6")
        k(f"v_xor_b32 v9, 64, v5\nv_add_u32 v9, v9, v6\nv_add_u32 v9, {24576 - 1024}, v9")
        k(f"v_add_u32 v10, {2 * (24576 - 1024)}, v8\nv_add_u32 v11, {2 * (24576 - 1024)}, v9")
        k(f"s_mul_i32 s{sD}, s{sW}, {32 * 3072}\ns_lshl_b32 s{sB}, s{sJ}, 7\ns_add_u32 s{sD}, s{sD}, s{sB}\ns_lshl_b32 s{sC_}, s{sW}, 12")
        for i in range(4):
            for b in self.wq_block(1, i, L_H + i * 16384, "wk"):
                k.add(b)
        for i in range(4):
            for b in self.wq_block(2, i, L_S1 + i * 16384, "wv"):
                k.add(b)
        for b in self.wq_block(0, 3, L_S2, "wq1"):
            k.add(b)
        for r, n in ((SWO, 524288), (SW1, 1409024), (SW2, 1409024), (SOUT, 2097152)):
            k(f"s_mov_b32 s{r + 2}, {hx(n)}\ns_mov_b32 s{r + 3}, 0x20000")
        k.drain_lgkm()
        k(f"s_add_u32 s{sT}, s{sT}, {hx(TAGC)}")
        self.stamp("issued")
        k(f"s_cmp_ge_u32 s{sSTRIP}, 48\ns_cbranch_scc1 L_np1")
        k.opt = "prod"
        self.unpack(252, 248, 1)
        for r in (252, 253):
            k(f"v_mul_f32 v{r + 2}, {hx(f2u(-LOG2E))}, v{r}")
        for r in (254, 255):
            k(f"v_exp_f32 v{r}, v{r}")
        for r in (254, 255):
            k(f"v_add_f32 v{r}, 1.0, v{r}")
        for r in (254, 255):
            k(f"v_rcp_f32 v{r}, v{r}")
        for r in (252, 253):
            k(f"v_mul_f32 v{r}, v{r}, v{r + 2}")
        k("v_cvt_pk_bf16_f32 v248, v252, v253")
        self.unpack(252, 248, 1)
        k(f"s_lshl_b32 s{sA}, s{sW}, 9\nv_lshl_add_u32 v5, v0, 3, s{sA}\nv_lshl_add_u32 v6, v3, 6, s{sA}")
        k(f"ds_write_b64 v5, v[252:253] offset:{L_SIL}")
        k.drain_lgkm()
        for q in range(4):
            k(f"ds_read_b128 {v(144 + 4 * q, 4)}, v6 offset:{L_SIL + 16 * q}")
        for i in range(16):
            t = 160 if i & 1 else 168
            self.unpack(t, 176 + 4 * i, 4)
            sp = v(144 + (i & ~1), 2)
            sel = i & 1
            for q in range(4):
                if i == 0:
                    k(f"v_pk_mul_f32 {v(240 + 2 * q, 2)}, {v(t + 2 * q, 2)}, {sp} op_sel:[0,{sel}] op_sel_hi:[1,{sel}]")
                else:
                    k(f"v_pk_fma_f32 {v(240 + 2 * q, 2)}, {v(t + 2 * q, 2)}, {sp}, {v(240 + 2 * q, 2)} op_sel:[0,{sel},0] op_sel_hi:[1,{sel},1]")
        for q in range(4):
            k(f"v_permlane32_swap_b32 v{240 + q}, v{244 + q}")
        for q in range(4):
            k(f"v_add_f32 v{240 + q}, v{240 + q}, v{244 + q}")
        for q in range(2):
            k(f"v_permlane16_swap_b32 v{240 + q}, v{242 + q}")
        for q in range(2):
            k(f"v_add_f32 v{240 + q}, v{240 + q}, v{242 + q}")
        for q in range(2):
            k(f"v_add_f32_dpp v{240 + q}, v{240 + q}, v{240 + q} row_ror:8 row_mask:0xf bank_mask:0xf")
        k(f"ds_write_b64 v5, v[240:241] offset:{L_MRED}")
        k.barrier()
        k(f"s_cmp_lg_u32 s{sW}, 0\ns_cbranch_scc1 L_np1")
        k.opt = "prod0"
        for q in range(4):
            k(f"ds_read_b64 {v(240 + 2 * q, 2)}, v5 offset:{L_MRED + 512 * q}")
        k(f"s_lshr_b32 s{sA}, s{sSTRIP}, 3\ns_cmp_eq_u32 s{sA}, 1\ns_cselect_b32 s{sB}, 1.0, 0\ns_cmp_eq_u32 s{sA}, 4\ns_cselect_b32 s{sB}, 1.0, s{sB}")
        k("v_lshlrev_b32 v6, 2, v4\nv_lshrrev_b32 v7, 5, v0\nv_lshl_add_u32 v6, v7, 1, v6\nv_bfe_u32 v7, v0, 4, 1\nv_add_u32 v6, v6, v7\nv_lshlrev_b32 v6, 3, v6")
        k(f"s_lshl_b32 s{sA}, s{sSTRIP}, 8\ns_add_u32 s{sA}, s{sA}, {MODG}")
        k("v_pk_add_f32 v[240:241], v[240:241], v[242:243]\nv_pk_add_f32 v[244:245], v[244:245], v[246:247]\nv_pk_add_f32 v[240:241], v[240:241], v[244:245]")
        k("v_cvt_pk_bf16_f32 v240, v240, v241")
        self.unpack(242, 240, 1)
        k(f"v_add_f32 v242, s{sB}, v242\nv_add_f32 v243, s{sB}, v243\nv_cvt_pk_bf16_f32 v240, v242, v243\nv_mov_b32 v241, s{sT}")
        k("s_mov_b32 exec_lo, 0x00ff00ff\ns_mov_b32 exec_hi, 0x00ff00ff")
        k(f"buffer_store_dwordx2 v[240:241], v6, {srd(SWS)}, s{sA} offen sc1")
        k("s_mov_b64 exec, -1")
        k.opt = False
        k("L_np1:")
        self.stamp("strip")

    def wq_block(self, part, i, lds, tag):
        r = [Inst(f"s_add_u32 m0, s{sC_}, {lds}"),
             Inst(f"s_add_u32 s{sA}, s{sD}, {part * 1024 + i * 4 * 32 * 3072}")]
        for q in range(4):
            r.append(Inst(f"buffer_load_dwordx4 v{8 + q}, {srd(SWQ)}, s{sA} offen offset:{q * 1024} lds", tag))
        return r

    def p1_ln(self):
        k = self.k
        ONE = 0x3F803F80
        k(f"s_mov_b32 s{sB}, {hx(ONE)}")
        S, Q = 144, 160
        for r in range(16):
            x = 16 + 8 * r
            for q in range(4):
                k(f"v_dot2_f32_bf16 v{S + r}, v{x + 4 + q}, s{sB}, {'0' if q == 0 else 'v%d' % (S + r)}")
            for q in range(4):
                k(f"v_dot2_f32_bf16 v{Q + r}, v{x + 4 + q}, v{x + 4 + q}, {'0' if q == 0 else 'v%d' % (Q + r)}")
            self.unpack(x, x + 4, 4)
        for B in (S, Q):
            for r in range(8):
                k(f"v_permlane32_swap_b32 v{B + r}, v{B + r + 8}")
        for B in (S, Q):
            for r in range(8):
                k(f"v_add_f32 v{B + r}, v{B + r}, v{B + r + 8}")
        for B in (S, Q):
            for r in range(4):
                k(f"v_permlane16_swap_b32 v{B + r}, v{B + r + 4}")
        for B in (S, Q):
            for r in range(4):
                k(f"v_add_f32 v{B + r}, v{B + r}, v{B + r + 4}")
        for sh in (8, 4, 2, 1):
            for B in (S, Q):
                for r in range(4):
                    k(f"v_add_f32_dpp v{B + r}, v{B + r}, v{B + r} row_ror:{sh} row_mask:0xf bank_mask:0xf")
        T = 176
        k(f"s_mov_b32 s{sA}, {hx(f2u(1.0 / 512))}")
        for r in range(4):
            k(f"v_mul_f32 v{S + r}, s{sA}, v{S + r}")
        for r in range(4):
            k(f"v_mul_f32 v{T + r}, v{S + r}, v{S + r}")
        for r in range(4):
            k(f"v_fma_f32 v{Q + r}, v{Q + r}, s{sA}, -v{T + r}")
        for r in range(4):
            k(f"v_max_f32 v{Q + r}, 0, v{Q + r}")
        for r in range(4):
            k(f"v_add_f32 v{Q + r}, {hx(f2u(1e-5))}, v{Q + r}")
        for r in range(4):
            k(f"v_rsq_f32 v{T + r}, v{Q + r}")
        for r in range(4):
            k(f"v_mul_f32_e64 v{T + 4 + r}, -v{S + r}, v{T + r}")
        RS = lambda row, e: 144 + 2 * row + e
        for e in range(2):
            for r in range(4):
                k(f"v_mov_b32 v{RS(r, e)}, v{T + 4 * e + r}\nv_mov_b32 v{RS(r + 4, e)}, v{T + 4 * e + r}")
        for e in range(2):
            for r in range(4):
                k(f"v_permlane16_swap_b32 v{RS(r, e)}, v{RS(r + 4, e)}")
        for e in range(2):
            for r in range(8):
                k(f"v_mov_b32 v{RS(r + 8, e)}, v{RS(r, e)}")
        for e in range(2):
            for r in range(8):
                k(f"v_permlane32_swap_b32 v{RS(r, e)}, v{RS(r + 8, e)}")
        for r in range(16):
            x = 16 + 8 * r
            for q in range(4):
                k(f"v_pk_fma_f32 {v(x + 2 * q, 2)}, {v(x + 2 * q, 2)}, {v(RS(r, 0), 2)}, {v(RS(r, 0), 2)} op_sel:[0,0,1] op_sel_hi:[1,0,1]")
        self.stamp("lnprep")
        k(f"s_lshl_b32 s{sA}, s{sW}, 10\ns_add_u32 s{sF}, s{sA}, {MODG}")
        ld = f"buffer_load_dwordx4 v[144:147], v2, {srd(SWS)}, s{sF} offen sc1"
        k(ld)
        k(f"v_bfe_u32 v5, v0, 3, 2\nv_xor_b32 v5, s{sW}, v5\nv_lshlrev_b32 v5, 5, v5\nv_and_b32 v6, 3, v0\nv_lshl_add_u32 v5, v6, 3, v5")
        k("v_lshrrev_b32 v6, 4, v0\nv_lshl_add_u32 v5, v6, 10, v5\nv_bfe_u32 v6, v0, 2, 2\nv_lshl_add_u32 v12, v6, 7, v5")
        k(f"v_add_u32 v13, {L_S1}, v12\nv_add_u32 v12, {L_H}, v12")
        k.wait_vm("wk")
        k("s_barrier")
        for ks in range(16):
            for u in range(2):
                k(f"ds_read_b64_tr_b16 {v(176 + 4 * ks + 2 * u, 2)}, v12 offset:{ks * 4096 + u * 512}")
        k(f"s_getreg_b32 s{sA}, hwreg(HW_REG_XCC_ID, 0, 4)\nv_mov_b32 v148, s{sA}\nv_mov_b32 v149, s{sT}")
        k(f"v_cmp_eq_u32 vcc, 0, v0\nv_mov_b32 v14, {hx(OOB)}\nv_cndmask_b32 v14, v14, 0, vcc")
        k(f"s_lshl_b32 s{sA}, s2, 3\ns_add_u32 s{sA}, s{sA}, {ARR}\ns_cmp_eq_u32 s{sW}, 0\ns_cselect_b32 s{sA}, s{sA}, {hx(OOB)}")
        self.poll([ld], [145, 147])
        k(f"buffer_store_dwordx2 v[148:149], v14, {srd(SWS)}, s{sA} offen sc1")
        k(f"v_mov_b32 v145, v146\ns_lshl_b32 s{sA}, s{sW}, 9\nv_lshl_add_u32 v5, v0, 3, s{sA}")
        k(f"ds_write_b64 v5, v[144:145] offset:{L_MODB}")
        k.barrier()
        self.stamp("mod")
        k(f"ds_read_b128 v[144:147], v2 offset:{L_MODB}\nds_read_b128 v[148:151], v2 offset:{L_MODB + 1024}")
        k(f"s_lshl_b32 s{sA}, s{sW}, 14\ns_add_u32 s{sA}, s{sA}, {L_H}\nv_add_u32 v5, s{sA}, v2")
        self.unpack(240, 144, 4)
        self.unpack(248, 148, 4)
        for r in range(16):
            x = 16 + 8 * r
            for q in range(4):
                k(f"v_pk_fma_f32 {v(x + 2 * q, 2)}, {v(x + 2 * q, 2)}, {v(248 + 2 * q, 2)}, {v(240 + 2 * q, 2)}")
            k(f"v_xor_b32 v{6 + (r & 1)}, {r * 16}, v5")
            for q in range(4):
                k(f"v_cvt_pk_bf16_f32 v{x + q}, v{x + 2 * q}, v{x + 2 * q + 1}")
            k(f"ds_write_b128 v{6 + (r & 1)}, {v(x, 4)} offset:{r * 1024}")
        k(f"v_and_b32 v1, 15, v0\nv_lshrrev_b32 v3, 4, v0\nv_xor_b32 v3, v3, v1\nv_lshlrev_b32 v1, 10, v1\nv_lshl_add_u32 v4, v3, 4, v1\nv_add_u32 v4, {L_H}, v4")
        k.wait_vm("wv")
        k.barrier()
        k("v_xor_b32 v5, 64, v4\nv_xor_b32 v6, 128, v4\nv_xor_b32 v7, 192, v4")
        self.stamp("h")

    KL, VL, QF, KH = 176, 184, 200, 208
    VH = 192

    def hfrag(self, T, ks):
        return a_((ks * 4 + T) * 4, 4)

    def p1_gemm(self):
        k = self.k
        aK, aV, aQ = 144, 160, 240
        rd = [f"ds_read_b128 {self.hfrag(T, ks)}, v{4 + (ks & 3)} offset:{(ks >> 2) * 256 + T * 16384}" for ks in range(16) for T in range(4)]
        wv = [f"ds_read_b64_tr_b16 {v(16 + 4 * ks + 2 * u, 2)}, v13 offset:{ks * 4096 + u * 512}" for ks in range(16) for u in range(2)]
        PRE = 6
        for i in range(PRE):
            k(rd[i])
        for i in range(64):
            ks, T = i >> 2, i & 3
            k(f"{M16} {v(aK + 4 * T, 4)}, {v(176 + 4 * ks, 4)}, {self.hfrag(T, ks)}, {'0' if ks == 0 else v(aK + 4 * T, 4)}")
            if i + PRE < 64:
                k(rd[i + PRE])
            if i & 1:
                k(wv[i >> 1])
        k.wait_vm("wq1")
        k.barrier()
        self.stamp("kdone")
        bg = [self.wq_block(0, i, L_S1 + i * 16384, "wq2") for i in (2, 1, 0)]
        for atom in bg:
            for b in atom:
                k.add(b)
        for T in range(4):
            for p in range(2):
                k(f"v_cvt_pk_bf16_f32 v{self.KL + 2 * T + p}, v{aK + 4 * T + 2 * p}, v{aK + 4 * T + 2 * p + 1}")
        k(f"s_lshl_b32 s{sA}, s{sG}, 5\ns_add_u32 s{sF}, s{sA}, s{sHEAD}")
        k(f"s_lshl_b32 s{sA}, s{sF}, 11\ns_add_u32 s{sB}, s{sA}, {VB}\ns_add_u32 s{sA}, s{sA}, {KB}")
        for t in range(2):
            for p in range(2):
                k(f"v_permlane16_swap_b32 v{self.KL + 4 * t + p}, v{self.KL + 4 * t + 2 + p}")
        for t in range(2):
            k(f"buffer_store_dwordx4 {v(self.KL + 4 * t, 4)}, v2, {srd(SWS)}, s{sA} offen offset:{t * 1024} sc1", tag="kst")
        k(f"v_mov_b32 v15, s{sT}")
        k(f"s_lshl_b32 s{sF}, s{sF}, 7")
        for i in range(64):
            ks, T = i >> 2, i & 3
            k(f"{M16} {v(aV + 4 * T, 4)}, {self.hfrag(T, ks)}, {v(16 + 4 * ks, 4)}, {'0' if ks == 0 else v(aV + 4 * T, 4)}")
            if i == 44:
                k.wait_vm("kst")
                k(f"s_add_u32 s{sA}, s{sF}, {KFL}")
                k(f"buffer_store_dword v15, v14, {srd(SWS)}, s{sA} offen sc1")
        k(f"v_add_u32 v12, {L_S2 - L_H}, v12")
        for ks in (15, 14, 13, 12):
            for u in range(2):
                k(f"ds_read_b64_tr_b16 {v(80 + 4 * ks + 2 * u, 2)}, v12 offset:{(ks - 12) * 4096 + u * 512}")
        self.stamp("vdone")
        k(f"v_and_b32 v1, 15, v0\nv_lshrrev_b32 v3, 5, v0\nv_lshl_add_u32 v1, v3, 4, v1\nv_lshlrev_b32 v1, 4, v1")
        k(f"v_and_b32 v3, 16, v0\nv_lshl_add_u32 v1, v3, 20, v1")
        for T in range(4):
            f = self.VL + 4 * T
            for p in range(2):
                k(f"v_cvt_pk_bf16_f32 v{f + p}, v{aV + 4 * T + 2 * p}, v{aV + 4 * T + 2 * p + 1}")
                k(f"v_mov_b32 v{f + 2 + p}, 0x3f803f80")
        for T in range(4):
            for p in range(2):
                k(f"v_permlane16_swap_b32 v{self.VL + 4 * T + p}, v{self.VL + 4 * T + 2 + p}")
        for T in range(4):
            for p in range(2):
                k(f"v_permlane32_swap_b32 v{self.VL + 4 * T + p}, v{self.VL + 4 * T + 2 + p}")
        for T in range(4):
            k(f"buffer_store_dwordx4 {v(self.VL + 4 * T, 4)}, v1, {srd(SWS)}, s{sB} offen offset:{T * 512} sc1", tag="vst")
        k.wait_vm("wq2")
        k.barrier()
        wq = [f"ds_read_b64_tr_b16 {v(80 + 4 * ks + 2 * u, 2)}, v13 offset:{ks * 4096 + u * 512}" for ks in range(11, -1, -1) for u in range(2)]
        for i in range(64):
            ks, T = 15 - (i >> 2), i & 3
            k(f"{M16} {v(aQ + 4 * T, 4)}, {v(80 + 4 * ks, 4)}, {self.hfrag(T, ks)}, {'0' if ks == 15 else v(aQ + 4 * T, 4)}")
            if i < len(wq):
                k(wq[i])
            if i == 44:
                k.wait_vm("vst")
                k(f"s_add_u32 s{sA}, s{sF}, {VFL}")
                k(f"buffer_store_dword v15, v14, {srd(SWS)}, s{sA} offen sc1")
        k(f"s_mov_b32 s{sA}, {hx(f2u(0.25 * LOG2E))}")
        for r in range(16):
            k(f"v_mul_f32 v{aQ + r}, s{sA}, v{aQ + r}")
        for T in range(4):
            for p in range(2):
                k(f"v_cvt_pk_bf16_f32 v{self.QF + 2 * T + p}, v{aQ + 4 * T + 2 * p}, v{aQ + 4 * T + 2 * p + 1}")
        for t in range(2):
            for p in range(2):
                k(f"v_permlane16_swap_b32 v{self.QF + 4 * t + p}, v{self.QF + 4 * t + 2 + p}")
        self.stamp("qdone")


    def setup_rowdma(self):
        k = self.k
        k("v_lshrrev_b32 v3, 3, v0\nv_bfe_u32 v5, v0, 4, 1\nv_lshlrev_b32 v5, 2, v5\nv_and_b32 v6, 7, v0\nv_xor_b32 v5, v5, v6")
        k("v_lshlrev_b32 v5, 4, v5\nv_lshl_add_u32 v8, v3, 10, v5")
        k("v_add_u32 v9, 7168, v8\nv_add_u32 v10, 14336, v8\nv_add_u32 v11, 21504, v8")

    def rowdma(self, S, sbase, goff, slds, lds, tag, n=4):
        r = [Inst(f"s_add_u32 m0, s{slds}, {lds}"), Inst(f"s_add_u32 s{sA}, s{sbase}, {goff}")]
        for q in range(n):
            r.append(Inst(f"buffer_load_dwordx4 v{8 + q}, {srd(S)}, s{sA} offen offset:{q * 1024} lds", tag))
        return r

    def w1dma(self, ks, lds, tag):
        r = [Inst(f"s_add_u32 m0, s{self.sW3K}, {lds}"), Inst(f"s_add_u32 s{sA}, s{self.sW1B}, {ks * 32 * 2752}")]
        for cb in range(3):
            r.append(Inst(f"buffer_load_dwordx4 v{4 + cb}, {srd(SW1)}, s{sA} offen offset:{cb * 1024} lds", tag))
        return r

    def w1read(self, ks, off):
        return [Inst(f"ds_read_b64_tr_b16 {a_(64 + 12 * ks + 4 * f + 2 * u, 2)}, v{240 + f} offset:{off + u * 3072}") for f in range(3) for u in range(2)]

    sW1B, sW3K, sROWB, sW16K, sGX, sST16, sXCC, sW2B = 32, 33, 34, 35, 36, 37, 38, 39
    X1 = 16
    SA, SB, SM, NEGM, OA, PP, MB, OFA = 32, 48, 64, 80, 96, 112, 136, 144
    R_WO = POOL
    R_A = POOL + 65536
    R_X = POOL + 65536 + 73728
    RED = POOL + 65536 + 61440

    def p2_setup(self):
        k = self.k
        k(f"s_mul_i32 s{sA}, s{sJ}, 5\ns_min_u32 s{sB}, s{sJ}, 3\ns_add_u32 s{sA}, s{sA}, s{sB}\ns_lshl_b32 s{self.sST16}, s{sA}, 1")
        k(f"s_lshl_b32 s{sA}, s{self.sST16}, 5\ns_mul_i32 s{sB}, s{sW}, {8 * 2752}\ns_add_u32 s{sA}, s{sA}, s{sB}\ns_add_u32 s{self.sW1B}, s{sA}, {2048 - 1792}")
        k(f"s_sub_u32 s{SW1}, s{SW1}, 2048\ns_subb_u32 s{SW1 + 1}, s{SW1 + 1}, 0\ns_mov_b32 s{SW1 + 2}, {1409024 + 2048}")
        k(f"s_mul_i32 s{self.sW3K}, s{sW}, 3072\ns_lshl_b32 s{self.sW16K}, s{sW}, 14")
        k(f"s_lshl_b32 s{sA}, s{sW}, 17\ns_lshl_b32 s{sB}, s{sJ}, 7\ns_add_u32 s{self.sROWB}, s{sA}, s{sB}")
        k(f"s_mul_i32 s{sA}, s{sW}, {352 * 1024}\ns_add_u32 s{self.sW2B}, s{sA}, s{sB}")
        k(f"s_lshl_b32 s{self.sGX}, s{sG}, 1")
        k.barrier()
        self.setup_rowdma()
        k(f"v_and_b32 v3, 3, v0\nv_sub_u32 v3, s{sG}, v3\nv_add_u32 v3, -1, v3\nv_cmp_gt_i32 vcc, 0, v3\nv_mov_b32 v5, s{sG}\nv_cndmask_b32 v3, v3, v5, vcc\nv_lshlrev_b32 v3, 12, v3")
        k(f"s_lshl_b32 s{sA}, s{sHEAD}, 7\ns_add_u32 s{sF}, s{sA}, {KFL}\ns_add_u32 s{sD}, s{sA}, {VFL}")
        ldk = f"buffer_load_dword v5, v3, {srd(SWS)}, s{sF} offen sc1"
        k(ldk)
        k(f"v_and_b32 v6, 7, v0\nv_lshlrev_b32 v13, 2, v6\nv_lshlrev_b32 v6, 6, v6\ns_andn2_b32 s{sA}, s2, 0x38\ns_lshl_b32 s{sA}, s{sA}, 3\ns_add_u32 s{sC_}, s{sA}, {ARR}")
        lda = f"buffer_load_dwordx2 v[32:33], v6, {srd(SWS)}, s{sC_} offen sc1"
        k(lda)
        k(f"s_lshl_b32 s{sA}, s{sW}, 11\ns_add_u32 s{sB}, s{sA}, {MODG + 4096}")
        ldm = [f"buffer_load_dwordx4 {v(36 + 4 * q, 4)}, v2, {srd(SWS)}, s{sB} offen offset:{q * 1024} sc1" for q in range(2)]
        k("\n".join(ldm))
        for g in range(4):
            for b in self.rowdma(SWO, self.sROWB, g * 32768, self.sW16K, self.R_WO + g * 4096, "wo"):
                k.add(b)
        k("v_and_b32 v12, 31, v0\nv_lshrrev_b32 v7, 5, v0\nv_lshlrev_b32 v7, 2, v7\nv_sub_u32 v12, v12, v7")
        for r in range(16):
            k(f"v_cmp_le_i32 s[{SMASK + 2 * r}:{SMASK + 2 * r + 1}], {8 * (r >> 2) + (r & 3)}, v12")
        k(f"v_mov_b32 v7, 0xffff\nv_mov_b32 v12, s{sHI}")
        for p in range(8):
            k(f"v_cndmask_b32 v{self.MB + p}, 0, v7, s[{SMASK + 4 * p}:{SMASK + 4 * p + 1}]")
            k(f"v_cndmask_b32 v{self.PP + p}, 0, v12, s[{SMASK + 4 * p + 2}:{SMASK + 4 * p + 3}]")
        for p in range(8):
            k(f"v_or_b32 v{self.MB + p}, v{self.MB + p}, v{self.PP + p}")
        for m in range(4):
            k(f"s_cmp_ge_u32 s{sG}, {4 - m}\ns_cselect_b32 s{sA}, 0x3f803f80, 0\nv_mov_b32 v7, s{sA}")
            for r in range(16):
                k(f"v_accvgpr_write_b32 a{self.VH + 16 * m + r}, v7")
        self.poll([ldk], [5])
        self.stamp("kflag")
        k(f"s_lshl_b32 s{sA}, s{sG}, 5\ns_add_u32 s{sA}, s{sA}, s{sHEAD}\ns_lshl_b32 s{sE}, s{sA}, 11")
        for m in range(4):
            k(f"s_add_u32 s{sA}, s{sE}, {KB + (m - 4) * 65536}\ns_cmp_ge_u32 s{sG}, {4 - m}\ns_cselect_b32 s{sA}, s{sA}, {hx(OOB)}")
            for t in range(2):
                k(f"buffer_load_dwordx4 {v(self.KH + 8 * m + 4 * t, 4)}, v2, {srd(SWS)}, s{sA} offen offset:{t * 1024} sc1")
        ldv = f"buffer_load_dword v5, v3, {srd(SWS)}, s{sD} offen sc1"
        k(ldv)
        self.poll([lda], [33])
        k(f"s_getreg_b32 s{sA}, hwreg(HW_REG_XCC_ID, 0, 4)\nv_cmp_ne_u32 vcc, s{sA}, v32\ns_cmp_lg_u64 vcc, 0\ns_cselect_b32 s3, 1, 0")
        self.poll(ldm, [37, 39, 41, 43])
        k(f"v_mov_b32 v37, v38\nv_mov_b32 v41, v42\ns_lshl_b32 s{sA}, s{sW}, 10\nv_lshl_add_u32 v7, v0, 3, s{sA}")
        k(f"ds_write_b64 v7, v[36:37] offset:{L_MODB + 2048}\nds_write_b64 v7, v[40:41] offset:{L_MODB + 2048 + 512}")
        k(f"v_bfe_u32 v7, v0, 3, 1\ns_lshr_b32 s{sA}, s{sW}, 1\nv_xor_b32 v7, s{sA}, v7\nv_lshlrev_b32 v7, 6, v7")
        k(f"v_bfe_u32 v12, v0, 4, 1\ns_and_b32 s{sA}, s{sW}, 1\nv_xor_b32 v12, s{sA}, v12\nv_lshl_add_u32 v7, v12, 5, v7")
        k("v_and_b32 v12, 3, v0\nv_lshl_add_u32 v7, v12, 3, v7\nv_bfe_u32 v12, v0, 2, 2\nv_lshl_add_u32 v7, v12, 7, v7\nv_lshrrev_b32 v12, 5, v0")
        k(f"v_lshl_add_u32 v244, v12, 9, v7\nv_lshl_add_u32 v246, v12, 10, v7\ns_add_u32 s{sA}, s{self.sW16K}, {self.R_WO}\nv_add_u32 v244, s{sA}, v244\nv_xor_b32 v245, 64, v244")
        self.poll([ldv], [5])
        self.stamp("vflag")
        k("s_mov_b32 exec_lo, 0xffff\ns_mov_b32 exec_hi, 0xffff")
        for m in range(4):
            k(f"s_add_u32 s{sA}, s{sE}, {VB + (m - 4) * 65536}\ns_cmp_ge_u32 s{sG}, {4 - m}\ns_cselect_b32 s{sA}, s{sA}, {hx(OOB)}")
            for T in range(4):
                k(f"buffer_load_dwordx4 {a_(self.VH + 16 * m + 4 * T, 4)}, v1, {srd(SWS)}, s{sA} offen offset:{T * 512} sc1")
        k("s_mov_b64 exec, -1")
        k.wait_vm("wo")
        for s_ in range(8):
            for p in range(2):
                for u in range(2):
                    k(f"ds_read_b64_tr_b16 {a_((s_ * 2 + p) * 4 + 2 * u, 2)}, v{244 + p} offset:{(16 * s_ + 8 * u) * 128}")
        k("v_lshrrev_b32 v7, 3, v0\nv_lshrrev_b32 v12, 4, v0\nv_and_b32 v4, 7, v0\nv_xor_b32 v4, v4, v12\nv_lshlrev_b32 v4, 4, v4\nv_lshl_add_u32 v4, v7, 10, v4")
        k("v_xor_b32 v5, 64, v4\nv_add_u32 v5, 7168, v5")
        k(f"s_lshl_b32 s{sA}, s{sW}, 11\ns_add_u32 m0, s{sA}, {self.R_X}\ns_lshl_b32 s{sA}, s{sG}, 16\ns_add_u32 s{sA}, s{sA}, s{self.sW16K}\ns_lshl_b32 s{sB}, s{sJ}, 7\ns_add_u32 s{sA}, s{sA}, s{sB}")
        k(f"buffer_load_dwordx4 v4, {srd(SX)}, s{sA} offen lds\nbuffer_load_dwordx4 v5, {srd(SX)}, s{sA} offen offset:1024 lds", tag="xr")
        k("v_lshrrev_b32 v7, 3, v0\nv_mul_u32_u24 v7, 2752, v7\nv_bfe_u32 v12, v0, 1, 2\nv_lshrrev_b32 v4, 4, v0\nv_xor_b32 v12, v12, v4\nv_lshl_add_u32 v7, v12, 5, v7")
        k("v_and_b32 v12, 1, v0\nv_lshl_add_u32 v6, v12, 4, v7\nv_add_u32 v5, 896, v6\nv_add_u32 v4, 1792, v6")
        k("v_lshrrev_b32 v7, 5, v0\nv_mul_u32_u24 v7, 6144, v7\nv_bfe_u32 v12, v0, 2, 3\nv_lshl_add_u32 v7, v12, 7, v7\nv_and_b32 v12, 3, v0\nv_lshl_add_u32 v7, v12, 3, v7\nv_bfe_u32 v12, v0, 3, 2")
        for f in range(3):
            k(f"s_mul_i32 s{sA}, s{sW}, 3\ns_add_u32 s{sA}, s{sA}, {f}\ns_and_b32 s{sB}, s{sA}, 3\ns_lshr_b32 s{sA}, s{sA}, 2\ns_lshl_b32 s{sA}, s{sA}, 10\ns_add_u32 s{sA}, s{sA}, {self.R_A}")
            k(f"v_xor_b32 v{240 + f}, s{sB}, v12\nv_lshl_add_u32 v{240 + f}, v{240 + f}, 5, v7\nv_add_u32 v{240 + f}, s{sA}, v{240 + f}")
        self.touch_ws()
        self.pre_stamps = list(self.used_stamps)
        if self.force_slow:
            k("s_branch L_slowmode")
        else:
            k("s_cmp_lg_u32 s3, 0\ns_cbranch_scc1 L_slowmode")

    def touch_ws(self):
        k = self.k
        k("v_lshlrev_b32 v7, 7, v0\nv_min_u32 v12, 0x380, v7")
        for X in range(2):
            k(f"s_add_u32 s{sA}, s{self.sGX}, {X}\ns_lshl_b32 s{sB}, s{sA}, 5\ns_add_u32 s{sB}, s{sB}, s{sHEAD}\ns_lshl_b32 s{sB}, s{sB}, 10\ns_add_u32 s{sB}, s{sB}, {OB}")
            k(f"buffer_load_dword v248, v12, {srd(SWS)}, s{sB} offen", tag="touch")
            k(f"s_lshl_b32 s{sB}, s{sA}, 1\ns_and_b32 s{sC_}, s{sW}, 1\ns_add_u32 s{sB}, s{sB}, s{sC_}\ns_lshl_b32 s{sB}, s{sB}, 4\ns_lshr_b32 s{sC_}, s{sHEAD}, 1\ns_add_u32 s{sB}, s{sB}, s{sC_}\ns_lshl_b32 s{sB}, s{sB}, 10\ns_add_u32 s{sB}, s{sB}, {YB}")
            k(f"buffer_load_dword v249, v12, {srd(SWS)}, s{sB} offen", tag="touch")
        k("v_min_u32 v12, 0xb80, v7")
        for X in range(2):
            k(f"s_add_u32 s{sA}, s{self.sGX}, {X}\ns_mul_i32 s{sA}, s{sA}, 88\ns_mul_i32 s{sB}, s{sW}, 3\ns_add_u32 s{sA}, s{sA}, s{sB}\ns_add_u32 s{sA}, s{sA}, s{self.sST16}\ns_lshl_b32 s{sA}, s{sA}, 10\ns_add_u32 s{sA}, s{sA}, {HB}")
            k(f"buffer_load_dword v250, v12, {srd(SWS)}, s{sA} offen", tag="touch")
        k(f"v_lshrrev_b32 v7, 1, v0\nv_lshlrev_b32 v7, 13, v7\nv_and_b32 v12, 1, v0\nv_lshl_add_u32 v7, v12, 7, v7\ns_lshl_b32 s{sA}, s{sG}, 8\ns_add_u32 s{sA}, s{sA}, {OFL}\nv_add_u32 v7, s{sA}, v7")
        k(f"v_bfe_u32 v12, v0, 2, 1\nv_lshlrev_b32 v12, 12, v12\nv_and_b32 v251, 3, v0\nv_lshl_add_u32 v12, v251, 7, v12\ns_lshl_b32 s{sA}, s{sG}, 13\ns_lshl_b32 s{sB}, s{sJ}, 9\ns_add_u32 s{sA}, s{sA}, s{sB}\ns_add_u32 s{sA}, s{sA}, {STG}\nv_add_u32 v12, s{sA}, v12")
        k("v_cmp_gt_u32 vcc, 6, v0\nv_cndmask_b32 v7, v12, v7, vcc")
        k(f"buffer_load_dword v251, v7, {srd(SWS)}, 0 offen", tag="touch")

    def tiles(self, X):
        H = lambda n: (v(self.KH + 4 * n, 4), [a_(self.VH + 8 * n + 4 * s_, 4) for s_ in range(2)], n)
        L = lambda n: (v(self.KL + 4 * n, 4), [v(self.VL + 8 * n + 4 * s_, 4) for s_ in range(2)], None)
        if X == 0:
            return L(0), H(0), [H(n) for n in range(7, 0, -1)]
        return L(1), H(1), [L(0)] + [H(n) for n in range(7, 1, -1)]

    def skip_unless(self, n):
        k = self.k
        lab = k.lab("skip")
        k(f"s_cmp_lt_u32 s{self.sGX}, {8 - n}\ns_cbranch_scc1 {lab}")
        k.opt = lab
        return lab

    def attn_generic(self, X):
        k = self.k
        SA, SB, SM, NG, OA, PP, MB = self.SA, self.SB, self.SM, self.NEGM, self.OA, self.PP, self.MB
        Q = v(self.QF + 4 * X, 4)
        diag, old, full = self.tiles(X)
        m = NG
        k(f"{M32} {v(SA, 16)}, {diag[0]}, {Q}, 0\n{M32} {v(SB, 16)}, {old[0]}, {Q}, 0")
        lab = k.lab("old")
        k(f"s_cmp_ge_u32 s{self.sGX}, {8 - old[2]}\ns_cbranch_scc1 {lab}")
        k.opt = lab
        for r in range(16):
            k(f"v_mov_b32 v{SB + r}, 0xff800000")
        k.opt = False
        k(f"{lab}:")
        for r in range(16):
            k(f"v_cndmask_b32 v{SM + r}, v{SB + r}, v{SA + r}, s[{SMASK + 2 * r}:{SMASK + 2 * r + 1}]")
        k(f"v_max_f32 v{m}, v{SM}, v{SM + 1}")
        for r in range(2, 16, 2):
            k(f"v_max3_f32 v{m}, v{m}, v{SM + r}, v{SM + r + 1}")
        for i, t in enumerate(full):
            S = SA if i & 1 else SB
            lab = self.skip_unless(t[2]) if t[2] is not None else None
            k(f"{M32} {v(S, 16)}, {t[0]}, {Q}, 0")
            for r in range(0, 16, 2):
                k(f"v_max3_f32 v{m}, v{m}, v{S + r}, v{S + r + 1}")
            if lab:
                k.opt = False
                k(f"{lab}:")
        k(f"v_mov_b32 v{m + 1}, v{m}\nv_permlane32_swap_b32 v{m}, v{m + 1}\nv_max_f32 v{m}, v{m}, v{m + 1}\nv_sub_f32 v{m}, 0, v{m}")
        for r in range(1, 16):
            k(f"v_mov_b32 v{NG + r}, v{m}")
        for r in range(16):
            k(f"v_add_f32 v{SM + r}, v{SM + r}, v{m}")
        for r in range(16):
            k(f"v_exp_f32 v{SM + r}, v{SM + r}")
        for p in range(8):
            k(f"v_cvt_pk_bf16_f32 v{PP + p}, v{SM + 2 * p}, v{SM + 2 * p + 1}")
        for p in range(8):
            k(f"v_and_b32 v{PP + 8 + p}, v{PP + p}, v{MB + p}")
        for p in range(8):
            k(f"v_xor_b32 v{PP + p}, v{PP + p}, v{PP + 8 + p}")
        O = v(OA, 16)
        k(f"{M32} {O}, {diag[1][0]}, {v(PP + 8, 4)}, 0\n{M32} {O}, {diag[1][1]}, {v(PP + 12, 4)}, {O}")
        k(f"{M32} {O}, {old[1][0]}, {v(PP, 4)}, {O}\n{M32} {O}, {old[1][1]}, {v(PP + 4, 4)}, {O}")
        for i, t in enumerate(full):
            S = SA if i & 1 else SB
            P = PP + 16 if i & 1 else PP + 8
            lab = self.skip_unless(t[2]) if t[2] is not None else None
            k(f"{M32} {v(S, 16)}, {t[0]}, {Q}, {v(NG, 16)}")
            for r in range(16):
                k(f"v_exp_f32 v{S + r}, v{S + r}")
            for p in range(8):
                k(f"v_cvt_pk_bf16_f32 v{P + p}, v{S + 2 * p}, v{S + 2 * p + 1}")
            k(f"{M32} {O}, {t[1][0]}, {v(P, 4)}, {O}\n{M32} {O}, {t[1][1]}, {v(P + 4, 4)}, {O}")
            if lab:
                k.opt = False
                k(f"{lab}:")

    def attn_out(self, X, sc):
        k = self.k
        OA = self.OA
        k(f"s_add_u32 s{sA}, s{self.sGX}, {X}\ns_lshl_b32 s{sA}, s{sA}, 5\ns_add_u32 s{sA}, s{sA}, s{sHEAD}\ns_lshl_b32 s{sB}, s{sA}, 10\ns_add_u32 s{sB}, s{sB}, {OB}")
        k(f"v_rcp_f32 v{OA + 8}, v{OA + 8}")
        for r in range(8):
            k(f"v_mul_f32 v{OA + r}, v{OA + r}, v{OA + 8}")
        for p in range(4):
            k(f"v_cvt_pk_bf16_f32 v{OA + 12 + p}, v{OA + 2 * p}, v{OA + 2 * p + 1}")
        k(f"buffer_store_dwordx4 {v(OA + 12, 4)}, v2, {srd(SWS)}, s{sB} offen{sc}", tag=f"ost{X}")

    def flag_store(self, base, X, tag, sc):
        k = self.k
        k.wait_vm(tag)
        k(f"s_add_u32 s{sA}, s{self.sGX}, {X}\ns_lshl_b32 s{sA}, s{sA}, 5\ns_add_u32 s{sA}, s{sA}, s{sHEAD}\ns_lshl_b32 s{sA}, s{sA}, 2\ns_add_u32 s{sA}, s{sA}, {base}")
        k(f"buffer_store_dword v15, v14, {srd(SWS)}, s{sA} offen{sc}")

    def flag_load8(self, base, X, dst):
        k = self.k
        k(f"s_add_u32 s{sA}, s{self.sGX}, {X}\ns_lshl_b32 s{sA}, s{sA}, 2\ns_add_u32 s{sA}, s{sA}, s{sW}\ns_lshl_b32 s{sA}, s{sA}, 5\ns_add_u32 s{sF}, s{sA}, {base}")
        ld = f"buffer_load_dword v{dst}, v13, {srd(SWS)}, s{sF} offen sc1"
        k(ld)
        return ld

    ACC, GA, CB, RT, YP = 32, 64, 72, 80, 104

    def reduce_write(self, red):
        k = self.k
        for p in (2, 3, 1):
            r = self.ACC + 16 * (p >> 1) + 8 * (p & 1)
            for q in range(2):
                k(f"ds_write_b128 v{108 + p}, {v(r + 4 * q, 4)} offset:{(p - 1) * 2048 + q * 1024 + red - self.redbase}")

    def reduce_read(self, red):
        k = self.k
        for p in (1, 2, 3):
            for q in range(2):
                k(f"ds_read_b128 {v(self.RT + 8 * (p - 1) + 4 * q, 4)}, v108 offset:{(p - 1) * 2048 + q * 1024 + red - self.redbase}")
        A, R = self.ACC, self.RT
        for q in range(4):
            k(f"v_pk_add_f32 {v(A + 2 * q, 2)}, {v(A + 2 * q, 2)}, {v(R + 2 * q, 2)}")
        for q in range(4):
            k(f"v_pk_add_f32 {v(R + 8 + 2 * q, 2)}, {v(R + 8 + 2 * q, 2)}, {v(R + 16 + 2 * q, 2)}")
        for q in range(4):
            k(f"v_pk_add_f32 {v(A + 2 * q, 2)}, {v(A + 2 * q, 2)}, {v(R + 8 + 2 * q, 2)}")

    def colvec(self, vec, dst, tmp):
        self.k(f"ds_read2_b64 {v(tmp, 4)}, v12 offset0:{vec * 128} offset1:{vec * 128 + 2}") if vec < 2 else None
        if vec >= 2:
            self.k(f"ds_read_b64 {v(tmp, 2)}, v12 offset:{L_MODB + vec * 1024}\nds_read_b64 {v(tmp + 2, 2)}, v12 offset:{L_MODB + vec * 1024 + 16}")
        self.unpack(dst, tmp, 4)

    def w2round(self, steps, slot0=0):
        atoms = []
        for i in range(0, len(steps), 2):
            atoms.append(self.rowdma(SW2, self.sW2B, steps[i] * 16384, self.sW12K, self.R_A + (slot0 + i) * 2048, "w2"))
        return atoms

    def w2reg(self, s_, p):
        return (a_, (s_ * 2 + p) * 4) if s_ < 8 else (v, 144 + ((s_ - 8) * 2 + p) * 4)

    def w2reads(self, steps, slot0=0):
        r = []
        for i, s_ in enumerate(steps):
            for p in range(2):
                f, base = self.w2reg(s_, p)
                for u in range(2):
                    r.append(Inst(f"ds_read_b64_tr_b16 {f(base + 2 * u, 2)}, v{self.W2A + p} offset:{(slot0 + i) * 2048 + u * 512}"))
        return r

    sW12K = 40
    W2A = 140

    def p3_half(self, X, sc, ofr):
        k = self.k
        A = self.ACC
        for s_ in range(8):
            for p in range(2):
                k(f"{M32} {v(A + 16 * p, 16)}, {a_((s_ * 2 + p) * 4, 4)}, {v(ofr + 4 * s_, 4)}, {'0' if s_ == 0 else v(A + 16 * p, 16)}")
        self.reduce_write(self.RED)
        x = self.X1 + 8 * X
        self.unpack(x, x + 4, 4)
        k.barrier()
        self.stamp(f"p3r{X}")
        self.reduce_read(self.RED)
        for r in range(8):
            k(f"v_fmac_f32 v{x + r}, v{self.GA + r}, v{A + r}")
        for r in range(8):
            k(f"v_mul_f32 v{A + r}, v{self.CB + r}, v{x + r}")
        k(f"s_add_u32 s{sA}, s{self.sGX}, {X}\ns_lshl_b32 s{sA}, s{sA}, 15\ns_lshl_b32 s{sB}, s{sHEAD}, 9\ns_add_u32 s{sA}, s{sA}, s{sB}\ns_add_u32 s{sA}, s{sA}, {YB}")
        for p in range(4):
            k(f"v_cvt_pk_bf16_f32 v{self.YP + p}, v{A + 2 * p}, v{A + 2 * p + 1}")
        k(f"buffer_store_dwordx4 {v(self.YP, 4)}, v3, {srd(SWS)}, s{sA} offen{sc}", tag=f"yst{X}")
        k(f"v_add_f32 v{A + 8}, v{x}, v{x + 1}\nv_mul_f32 v{A + 9}, v{x}, v{x}\nv_fmac_f32 v{A + 9}, v{x + 1}, v{x + 1}")
        for r in range(2, 8):
            k(f"v_add_f32 v{A + 8}, v{A + 8}, v{x + r}\nv_fmac_f32 v{A + 9}, v{x + r}, v{x + r}")
        k(f"v_permlane32_swap_b32 v{A + 8}, v{A + 9}\nv_add_f32 v{A + 8}, v{A + 8}, v{A + 9}")
        k(f"ds_write_b32 v7, v{A + 8} offset:{L_STP}")
        k.barrier()
        for q in range(4):
            k(f"ds_read_b64 {v(A + 2 * q, 2)}, v6 offset:{L_STP + 256 * q}")
        k(f"s_add_u32 s{sA}, s{self.sGX}, {X}\ns_lshl_b32 s{sA}, s{sA}, 12\ns_lshl_b32 s{sB}, s{sJ}, 9\ns_add_u32 s{sA}, s{sA}, s{sB}\ns_add_u32 s{sA}, s{sA}, {STG}\ns_cmp_eq_u32 s{sW}, 0\ns_cselect_b32 s{sB}, s{sA}, {hx(OOB)}")
        k(f"v_pk_add_f32 {v(A, 2)}, {v(A, 2)}, {v(A + 2, 2)}\nv_pk_add_f32 {v(A + 4, 2)}, {v(A + 4, 2)}, {v(A + 6, 2)}\nv_pk_add_f32 {v(A, 2)}, {v(A, 2)}, {v(A + 4, 2)}")
        k(f"v_mov_b32 v{A + 2}, v15\nv_mov_b32 v{A + 3}, v15")
        k(f"buffer_store_dwordx4 {v(A, 4)}, v5, {srd(SWS)}, s{sB} offen{sc}")
        self.flag_store(YFL, X, f"yst{X}", sc)
        self.stamp(f"p3e{X}")

    def o_loads(self, X, ofr):
        k = self.k
        k(f"s_add_u32 s{sA}, s{self.sGX}, {X}\ns_lshl_b32 s{sA}, s{sA}, 2\ns_add_u32 s{sA}, s{sA}, s{sW}\ns_lshl_b32 s{sA}, s{sA}, 13\ns_add_u32 s{sA}, s{sA}, {OB}\ns_add_u32 s{sB}, s{sA}, 4096")
        for s_ in range(8):
            k(f"buffer_load_dwordx4 {v(ofr + 4 * s_, 4)}, v2, {srd(SWS)}, s{sA if s_ < 4 else sB} offen offset:{(s_ & 3) * 1024} sc1")

    CS, BI, FA, YBUF, STV, FT, PK = 32, 44, 56, 80, 96, 104, 128

    def csbias(self):
        k = self.k
        k("v_and_b32 v4, 1, v0\nv_lshlrev_b32 v4, 10, v4\nv_sub_u32 v4, 4096, v4\nv_lshrrev_b32 v5, 5, v0\nv_lshl_add_u32 v4, v5, 5, v4\nv_bfe_u32 v5, v0, 4, 1\nv_lshl_add_u32 v4, v5, 3, v4")
        rd = lambda ks: f"ds_read2_b64 {v(self.YBUF + 4 * (ks & 3), 4)}, v4 offset0:{ks * 8} offset1:{ks * 8 + 2}"
        for ks in range(3):
            k(rd(ks))
        for ks in range(16):
            if ks + 3 < 16:
                k(rd(ks + 3))
            for f in range(3):
                k(f"{M16} {v(self.FA + 4 * f, 4)}, {a_(64 + 12 * ks + 4 * f, 4)}, {v(self.YBUF + 4 * (ks & 3), 4)}, {'0' if ks == 0 else v(self.FA + 4 * f, 4)}")
        k(f"v_mov_b32 v5, {hx(f2u(-LOG2E))}")
        for r in range(12):
            k(f"v_mov_b32_dpp v{self.CS + r}, v{self.FA + r} quad_perm:[0,0,2,2] row_mask:0xf bank_mask:0xf")
            k(f"v_mul_f32_dpp v{self.BI + r}, v{self.FA + r}, v5 quad_perm:[1,1,3,3] row_mask:0xf bank_mask:0xf")

    def y_fetch(self, X):
        k = self.k
        ld = self.flag_load8(YFL, X, 4)
        self.poll([ld], [4])
        self.stamp(f"yflag{X}")
        k(f"s_add_u32 s{sA}, s{self.sGX}, {X}\ns_lshl_b32 s{sA}, s{sA}, 15\ns_lshl_b32 s{sB}, s{sW}, 12\ns_add_u32 s{sA}, s{sA}, s{sB}\ns_add_u32 s{sA}, s{sA}, {YB}")
        for tt in range(2):
            k(f"s_add_u32 m0, s{sB}, {self.R_WO + X * 32768 + tt * 16384}")
            if tt:
                k(f"s_add_u32 s{sA}, s{sA}, 16384")
            for q in range(4):
                k(f"buffer_load_dwordx4 v2, {srd(SWS)}, s{sA} offen offset:{q * 1024} sc1 lds", tag=f"y{X}")
        lab = k.lab("nost")
        k(f"s_cmp_lg_u32 s{sW}, 0\ns_cbranch_scc1 {lab}")
        k.opt = lab
        T = self.FT
        k(f"v_and_b32 v4, 31, v0\nv_lshlrev_b32 v5, 3, v4\nv_lshlrev_b32 v4, 4, v4\nv_lshrrev_b32 v{T}, 5, v0\nv_lshl_add_u32 v4, v{T}, 11, v4")
        k(f"s_add_u32 s{sA}, s{self.sGX}, {X}\ns_lshl_b32 s{sA}, s{sA}, 12\ns_add_u32 s{sF}, s{sA}, {STG}")
        lds_ = [f"buffer_load_dwordx4 {v(T + 4 * q, 4)}, v4, {srd(SWS)}, s{sF} offen offset:{q * 512} sc1" for q in range(4)]
        k("\n".join(lds_))
        self.poll(lds_, [T + 2, T + 6, T + 10, T + 14])
        k(f"v_pk_add_f32 {v(T, 2)}, {v(T, 2)}, {v(T + 4, 2)}\nv_pk_add_f32 {v(T + 8, 2)}, {v(T + 8, 2)}, {v(T + 12, 2)}\nv_pk_add_f32 {v(T, 2)}, {v(T, 2)}, {v(T + 8, 2)}")
        k(f"v_permlane32_swap_b32 v{T}, v{T + 1}\nv_add_f32 v{T}, v{T}, v{T + 1}\nv_mov_b32 v{T + 1}, v{T}\nv_permlane32_swap_b32 v{T}, v{T + 1}")
        k(f"s_mov_b32 s{sA}, {hx(f2u(1.0 / 512))}\nv_mul_f32 v{T}, s{sA}, v{T}\nv_mul_f32 v{T + 2}, v{T}, v{T}\nv_fma_f32 v{T + 1}, v{T + 1}, s{sA}, -v{T + 2}")
        k(f"v_max_f32 v{T + 1}, 0, v{T + 1}\nv_add_f32 v{T + 1}, {hx(f2u(1e-5))}, v{T + 1}\nv_rsq_f32 v{T + 1}, v{T + 1}\nv_mul_f32 v{T + 1}, {hx(f2u(-LOG2E))}, v{T + 1}")
        k(f"ds_write_b64 v5, {v(T, 2)} offset:{L_ST + X * 256}")
        k.drain_lgkm()
        k.opt = False
        k(f"{lab}:")

    def p4_mfma(self, X, tt):
        k = self.k
        acc = self.FA + 12 * tt
        rd = lambda ks: f"ds_read_b128 {v(self.YBUF + 4 * (ks & 3), 4)}, v6 offset:{X * 32768 + tt * 16384 + ks * 1024}"
        for ks in range(3):
            k(rd(ks))
        for ks in range(16):
            if ks + 3 < 16:
                k(rd(ks + 3))
            for f in range(3):
                k(f"{M16} {v(acc + 4 * f, 4)}, {a_(64 + 12 * ks + 4 * f, 4)}, {v(self.YBUF + 4 * (ks & 3), 4)}, {'0' if ks == 0 else v(acc + 4 * f, 4)}")

    def p4_epi(self, X, tt):
        k = self.k
        acc, T = self.FA + 12 * tt, self.FT
        mu, rs = self.STV + 4 * X + 2 * tt, self.STV + 4 * X + 2 * tt + 1
        for r in range(12):
            k(f"v_fma_f32 v{acc + r}, -v{mu}, v{self.CS + r}, v{acc + r}")
        for r in range(12):
            k(f"v_fma_f32 v{acc + r}, v{acc + r}, v{rs}, v{self.BI + r}")
        for r in range(12):
            k(f"v_exp_f32 v{T + r}, v{acc + r}")
        for r in range(12):
            k(f"v_add_f32 v{T + r}, 1.0, v{T + r}")
        for r in range(12):
            k(f"v_rcp_f32 v{T + r}, v{T + r}")
        for r in range(12):
            k(f"v_mul_f32 v{T + r}, v{T + r}, v{acc + r}")
        for f in range(3):
            for p in range(2):
                k(f"v_cvt_pk_bf16_f32 v{self.PK + 4 * f + 2 * tt + p}, v{T + 4 * f + 2 * p}, v{T + 4 * f + 2 * p + 1}")

    def p4_store(self, X, sc):
        k = self.k
        k(f"s_add_u32 s{sA}, s{self.sGX}, {X}\ns_mul_i32 s{sA}, s{sA}, 88\ns_mul_i32 s{sB}, s{sW}, 3\ns_add_u32 s{sA}, s{sA}, s{sB}\ns_add_u32 s{sA}, s{sA}, s{self.sST16}\ns_lshl_b32 s{sA}, s{sA}, 10\ns_add_u32 s{sA}, s{sA}, {HB}")
        k(f"s_cmp_ge_u32 s{sJ}, 3\ns_cselect_b32 s{sB}, s{sW}, 0\ns_cmp_eq_u32 s{sB}, 3\ns_cselect_b32 s{sB}, {hx(OOB)}, s{sA}")
        for f in range(3):
            for p in range(2):
                k(f"v_permlane16_swap_b32 v{self.PK + 4 * f + p}, v{self.PK + 4 * f + 2 + p}")
        for f in range(3):
            k(f"buffer_store_dwordx4 {v(self.PK + 4 * f, 4)}, v2, {srd(SWS)}, s{sA if f == 0 else sB} offen offset:{f * 1024}{sc}", tag=f"hst{X}")

    def p5_fetch(self, X):
        k = self.k
        k(f"s_add_u32 s{sA}, s{self.sGX}, {X}\ns_lshl_b32 s{sA}, s{sA}, 7\ns_add_u32 s{sF}, s{sA}, {HFL}")
        ld = f"buffer_load_dword v4, v13, {srd(SWS)}, s{sF} offen sc1"
        k(ld)
        self.poll([ld], [4])
        self.stamp(f"hflag{X}")
        k(f"s_add_u32 s{sA}, s{self.sGX}, {X}\ns_mul_i32 s{sA}, s{sA}, 88\ns_mul_i32 s{sB}, s{sW}, 22\ns_add_u32 s{sA}, s{sA}, s{sB}\ns_lshl_b32 s{sA}, s{sA}, 10\ns_add_u32 s{sA}, s{sA}, {HB}")
        for s_ in range(22):
            if s_ == 20:
                k(f"s_cmp_eq_u32 s{sW}, 3\ns_cselect_b32 s{sA}, {hx(OOB)}, s{sA}")
            k(f"buffer_load_dwordx4 {a_(64 + 88 * X + 4 * s_, 4)}, v2, {srd(SWS)}, s{sA} offen offset:{(s_ & 3) * 1024} sc1")
            if s_ & 3 == 3:
                k(f"s_add_u32 s{sA}, s{sA}, 4096")

    def p5_half(self, X):
        k = self.k
        A = self.ACC
        for s_ in range(22):
            for p in range(2):
                f, base = self.w2reg(s_, p)
                k(f"{M32} {v(A + 16 * p, 16)}, {f(base, 4)}, {a_(64 + 88 * X + 4 * s_, 4)}, {'0' if s_ == 0 else v(A + 16 * p, 16)}")
        red = self.redbase + X * 24576
        self.reduce_write(red)
        k.barrier()
        self.stamp(f"p5r{X}")
        self.reduce_read(red)
        x = self.X1 + 8 * X
        for r in range(8):
            k(f"v_fmac_f32 v{x + r}, v{self.GA + r}, v{A + r}")
        k(f"s_add_u32 s{sA}, s{self.sGX}, {X}\ns_lshl_b32 s{sA}, s{sA}, 15\ns_lshl_b32 s{sB}, s{sHEAD}, 5\ns_add_u32 s{sA}, s{sA}, s{sB}")
        for p in range(4):
            k(f"v_cvt_pk_bf16_f32 v{self.YP + p}, v{x + 2 * p}, v{x + 2 * p + 1}")
        k(f"v_permlane32_swap_b32 v{self.YP}, v{self.YP + 2}\nv_permlane32_swap_b32 v{self.YP + 1}, v{self.YP + 3}")
        k(f"buffer_store_dwordx4 {v(self.YP, 4)}, v3, {srd(SOUT)}, s{sA} offen")

    def epoch(self):
        k = self.k
        lab = k.lab("noep")
        k(f"s_lshl_b32 s{sA}, s2, 2\ns_add_u32 s{sA}, s{sA}, s{sW}\ns_cmp_lg_u32 s{sA}, 3\ns_cbranch_scc1 {lab}")
        k.opt = lab
        k(f"s_mov_b32 s{sF}, {ARR}")
        lds_ = [f"buffer_load_dwordx4 {v(self.SA + 4 * q, 4)}, v2, {srd(SWS)}, s{sF} offen offset:{q * 1024} sc1" for q in range(2)]
        k("\n".join(lds_))
        self.poll(lds_, [self.SA + 1, self.SA + 3, self.SA + 5, self.SA + 7])
        k(f"buffer_store_dword v15, v14, {srd(SWS)}, 0 offen sc1")
        k.opt = False
        k(f"{lab}:")

    def post(self, slow):
        k = self.k
        sc = " sc1" if slow else ""
        emit = lambda l: [k.add(i) for i in l]
        self.epoch()
        self.stamp("attn")
        fg = self.capture(lambda: self.attn_generic(0))
        bg = [self.w1dma(ks, self.R_A + ks * 12288, "w1a") for ks in range(6)]
        fg, rest = merge(fg, bg, 300)
        emit(fg)
        for b in rest:
            emit(b)
        self.attn_out(0, sc)
        k.wait_vm("w1a", "xr")
        k.barrier()
        self.stamp("attnA")
        for ks in range(6):
            emit(self.w1read(ks, (ks % 5) * 12288 if ks < 5 else 61440))
        k(f"v_and_b32 v7, 31, v0\nv_bfe_u32 v12, v0, 1, 3\ns_lshl_b32 s{sA}, s{sW}, 1\nv_xor_b32 v12, s{sA}, v12\nv_lshlrev_b32 v7, 7, v7\nv_lshl_add_u32 v7, v12, 4, v7")
        k(f"v_lshrrev_b32 v12, 5, v0\nv_lshl_add_u32 v7, v12, 3, v7\nv_add_u32 v7, {self.R_X}, v7\nv_xor_b32 v12, 16, v7")
        for X in range(2):
            k(f"ds_read_b64 {v(self.X1 + 8 * X + 4, 2)}, v7 offset:{X * 4096}\nds_read_b64 {v(self.X1 + 8 * X + 6, 2)}, v12 offset:{X * 4096}")
        self.flag_store(OFL, 0, "ost0", sc)
        fg = self.capture(lambda: self.attn_generic(1))
        bg = [self.w1dma(ks, self.R_WO + (ks - 6) * 12288, "w1b") for ks in range(6, 11)]
        fg, rest = merge(fg, bg, 300)
        emit(fg)
        for b in rest:
            emit(b)
        ld = self.flag_load8(OFL, 0, 7)
        self.attn_out(1, sc)
        self.poll([ld], [7])
        self.o_loads(0, self.OFA)
        k.wait_vm("w1b")
        k.barrier()
        self.stamp("attnB")
        for f in range(3):
            k(f"v_add_u32 v{240 + f}, {self.R_WO - self.R_A}, v{240 + f}")
        for ks in range(6, 11):
            emit(self.w1read(ks, (ks - 6) * 12288))
        self.flag_store(OFL, 1, "ost1", sc)
        for ks in range(11, 16):
            emit(self.w1dma(ks, self.R_A + (ks - 11) * 12288, "w1c"))
        self.redbase = self.RED
        k(f"s_mul_i32 s{sA}, s{sW}, 6144\ns_add_u32 s{sA}, s{sA}, {self.RED}\nv_add_u32 v108, s{sA}, v2")
        k(f"v_lshrrev_b32 v4, 5, v0\ns_lshl_b32 s{sA}, s{sHEAD}, 5\nv_lshl_add_u32 v12, v4, 3, s{sA}")
        self.colvec(2, self.GA, self.RT)
        self.colvec(4, self.CB, self.RT + 4)
        k("v_bfe_u32 v3, v0, 4, 1\nv_lshlrev_b32 v3, 14, v3\nv_and_b32 v5, 15, v0\nv_lshl_add_u32 v3, v5, 4, v3\nv_lshl_add_u32 v3, v4, 8, v3")
        k(f"v_and_b32 v5, 31, v0\nv_lshlrev_b32 v6, 3, v5\nv_lshl_add_u32 v7, v4, 2, v6\ns_lshl_b32 s{sA}, s{sW}, 8\nv_add_u32 v7, s{sA}, v7\nv_lshlrev_b32 v5, 4, v5\nv_lshl_add_u32 v5, v4, 24, v5")
        self.p3_half_w(0, sc, self.OFA)
        ld = self.flag_load8(OFL, 1, 4)
        self.poll([ld], [4])
        self.o_loads(1, 112)
        k.wait_vm("w1c")
        self.p3_half_w(1, sc, 112)
        for f in range(3):
            k(f"v_add_u32 v{240 + f}, {self.R_A - self.R_WO}, v{240 + f}")
        for ks in range(11, 16):
            emit(self.w1read(ks, (ks - 11) * 12288))
        k(f"s_mul_i32 s{self.sW12K}, s{sW}, 12288\ns_add_u32 s{sA}, s{self.sW12K}, {self.R_A}\nv_add_u32 v{self.W2A}, s{sA}, v246\nv_xor_b32 v{self.W2A + 1}, 64, v{self.W2A}")
        self.y_fetch(0)
        k.wait_vm("y0")
        k.barrier()
        self.csbias()
        k(f"v_add_u32 v6, {self.R_WO}, v2\nv_and_b32 v7, 15, v0\nv_lshlrev_b32 v7, 3, v7")
        for tt in range(2):
            k(f"ds_read_b64 {v(self.STV + 2 * tt, 2)}, v7 offset:{L_ST + tt * 128}")
        rounds = [list(range(16, 22)), list(range(10, 16)), [8, 9, 0, 1, 2, 3], [4, 5, 6, 7]]
        def w2_round(n):
            st = rounds[n]
            k.drain_lgkm()
            for at in self.w2round(st):
                emit(at)
        def w2_take(n):
            k.wait_vm("w2")
            emit(self.w2reads(rounds[n]))
        self.stamp("p4s")
        w2_round(0)
        self.p4_mfma(0, 0)
        w2_take(0)
        self.p4_epi(0, 0)
        w2_round(1)
        self.p4_mfma(0, 1)
        w2_take(1)
        self.p4_epi(0, 1)
        self.p4_store(0, sc)
        self.y_fetch(1)
        self.flag_store(HFL, 0, "hst0", sc)
        k.wait_vm("y1")
        k.barrier()
        for tt in range(2):
            k(f"ds_read_b64 {v(self.STV + 4 + 2 * tt, 2)}, v7 offset:{L_ST + 256 + tt * 128}")
        w2_round(2)
        self.p4_mfma(1, 0)
        w2_take(2)
        self.p4_epi(1, 0)
        w2_round(3)
        self.p4_mfma(1, 1)
        w2_take(3)
        self.p4_epi(1, 1)
        self.p4_store(1, sc)
        self.stamp("p4e")
        k("v_and_b32 v13, 31, v0\nv_lshlrev_b32 v13, 2, v13")
        self.p5_fetch(0)
        self.flag_store(HFL, 1, "hst1", sc)
        self.colvec(5, self.GA, self.RT)
        k(f"s_mov_b32 s{sA}, {hx(f2u(-0.6931471805599453))}")
        for r in range(8):
            k(f"v_mul_f32 v{self.GA + r}, s{sA}, v{self.GA + r}")
        k("v_and_b32 v3, 31, v0\nv_lshlrev_b32 v3, 10, v3\nv_lshrrev_b32 v4, 5, v0\nv_lshl_add_u32 v3, v4, 4, v3")
        k.barrier()
        self.redbase = self.R_WO
        k(f"s_mul_i32 s{sA}, s{sW}, 6144\ns_add_u32 s{sA}, s{sA}, {self.R_WO}\nv_add_u32 v108, s{sA}, v2")
        self.p5_fetch(1)
        self.p5_half_w(0)
        self.p5_half_w(1)
        self.stamp("done")

    def _redaddr(self):
        k = self.k
        for p in (1, 2, 3):
            k(f"s_xor_b32 s{sA}, s{sW}, {p}\ns_mul_i32 s{sA}, s{sA}, 6144\ns_add_u32 s{sA}, s{sA}, {self.redbase}\nv_add_u32 v{108 + p}, s{sA}, v2")

    def p3_half_w(self, X, sc, ofr):
        if X == 0:
            self._redaddr()
        self.p3_half(X, sc, ofr)

    def p5_half_w(self, X):
        if X == 0:
            self._redaddr()
        self.p5_half(X)

    def finish(self):
        k = self.k
        if self.used_stamps:
            k.drain_lgkm()
            k(f"s_lshl_b32 s{sA}, s2, 2\ns_add_u32 s{sA}, s{sA}, s{sW}\ns_lshl_b32 s{sA}, s{sA}, 8\ns_add_u32 s{sA}, s{sA}, {DBG}")
            k("v_mov_b32 v5, 0")
            for n in range(len(self.used_stamps)):
                k(f"v_mov_b32 v6, s{self.slots[n]}\nbuffer_store_dword v6, v5, {srd(SWS)}, s{sA} offen offset:{4 * n}")
            k(f"s_memrealtime s[86:87]\ns_waitcnt lgkmcnt(0)\nv_mov_b32 v6, s86\nbuffer_store_dword v6, v5, {srd(SWS)}, s{sA} offen offset:64")
        k("s_endpgm")

    def dump_regs(self, first, n, slot):
        k = self.k
        k(f"s_lshl_b32 s{sA}, s2, 2\ns_add_u32 s{sA}, s{sA}, s{sW}\ns_lshl_b32 s{sA}, s{sA}, 14\ns_add_u32 s{sA}, s{sA}, {slot * 256}")
        k(f"s_mov_b32 s[{SWS + 2}:{SWS + 2}], 0x8000000".replace(f"s[{SWS + 2}:{SWS + 2}]", f"s{SWS + 2}"))
        k(f"s_add_u32 s{sA}, s{sA}, 0x2000000\nv_lshlrev_b32 v5, 2, v0")
        for i in range(n):
            k(f"buffer_store_dword v{first + i}, v5, {srd(SWS)}, s{sA} offen offset:{i * 256}")
        k(f"s_waitcnt vmcnt(0)\ns_mov_b32 s{SWS + 2}, {hx(WSZ)}")

    def build(self):
        k = self.k
        self.p0()
        self.p1_ln()
        self.p1_gemm()
        self.p2_setup()
        k.alt_begin()
        self.post(False)
        self.finish()
        k("L_fastend:")
        k.alt_end()
        k("L_slowmode:")
        st, self.stamps = self.stamps, (self.stamps if self.force_slow else [])
        if self.force_slow:
            self.used_stamps = [x for x in self.used_stamps if x in self.pre_stamps]
        self.post(True)
        self.finish()
        k("L_end:\ns_endpgm")
        k.finalize()
        return self.wrap(k.text())

    def wrap(self, body):
        head = open("adaLN_cond__sliding_block__dense_activation_silu__prompt.s.ref").read().split("; Override launch")[0]
        return f"""{head}; @launch grid=(256,1,1) block=(256,1,1) lds={LDS_BYTES}
.amdgcn_target "amdgcn-amd-amdhsa--gfx950"
.text
.globl {NAME}
.p2align 8
.type {NAME},@function
{NAME}:
{body}
.section .rodata,"a"
.p2align 6
.amdhsa_kernel {NAME}
  .amdhsa_next_free_vgpr 512
  .amdhsa_next_free_sgpr 102
  .amdhsa_accum_offset 256
  .amdhsa_group_segment_fixed_size 0
  .amdhsa_kernarg_size 88
  .amdhsa_user_sgpr_count 2
  .amdhsa_user_sgpr_kernarg_segment_ptr 1
  .amdhsa_system_sgpr_workgroup_id_x 1
  .amdhsa_float_denorm_mode_32 3
.end_amdhsa_kernel
"""


if __name__ == "__main__":
    import argparse
    ap = argparse.ArgumentParser()
    ap.add_argument("-o", default="out.s")
    ap.add_argument("--upto", type=int, default=99)
    ap.add_argument("--stamps", default="")
    ap.add_argument("--slow", action="store_true")
    a = ap.parse_args()
    g = Gen(a.upto, [s for s in a.stamps.split(",") if s], a.slow)
    txt = g.build()
    open(a.o, "w").write(txt)
    print("instructions:", sum(1 for i in g.k.final if i.states), "hazard nops:", g.k.nops, file=sys.stderr)
    for m, t in g.k.timeline():
        print(f"  {m:10s} {t}", file=sys.stderr)
```

```python
import sys
from asmgen import Prog, Inst, Pseudo, merge

NAME = "adaLN_cond__sliding_block__dense_activation_silu__prompt_kernel"

EPOCH, ARR, MODG = 0x0, 0x1000, 0x2000
OFL, YFL, HFL = 0x8000, 0xA000, 0xC000
STG = 0x10000
KFL, VFL = 0x60000, 0x80000
DBG = 0xA0000
KB, VB, OB, YB, HB = 0x100000, 0x300000, 0x500000, 0x700000, 0x900000
HSTR = 88 * 1024
WSZ = 0x1000000
OOB = WSZ
TAGC = 0x9E3779B9

L_MODB = 0
L_SIL = 6144
L_MRED = 8192
L_STP = 8192
L_ST = 9216
POOL = 10240
LDS_BYTES = 163840
L_H = POOL
L_S1 = POOL + 65536
L_S2 = POOL + 131072

SX, SWQ, SWO, SW1, SW2, SWS, SOUT, SMOD, SC = 4, 8, 12, 16, 20, 24, 28, 32, 36
SMASK = 40
sT, sW, sJ, sG, sHEAD, sSTRIP = 72, 73, 74, 75, 76, 77
sA, sB, sC_, sD, sE, sF = 78, 79, 80, 81, 82, 83
sCNT = 84
SC_DBG = 100
sHI = 85
srd = lambda n: f"s[{n}:{n + 3}]"
v = lambda a, n=1: f"v{a}" if n == 1 else f"v[{a}:{a + n - 1}]"
a_ = lambda a, n=1: f"a{a}" if n == 1 else f"a[{a}:{a + n - 1}]"
LOG2E = 1.4426950408889634


def f2u(x):
    import struct
    return struct.unpack("<I", struct.pack("<f", x))[0]


def hx(x):
    return hex(x & 0xFFFFFFFF)


M16 = "v_mfma_f32_16x16x32_bf16"
M32 = "v_mfma_f32_32x32x16_bf16"


class Gen:
    def __init__(self, upto=99, stamps=(), force_slow=False, dbg=False):
        self.dbg = dbg
        self.k = Prog()
        self.upto = upto
        self.stamps = list(stamps)
        self.force_slow = force_slow
        self.slots = [86, 88, 90, 92, 94, 96, 98, 100]
        self.used_stamps = []

    def stamp(self, name):
        self.k.mark(name)
        if name in self.stamps and name not in self.used_stamps:
            s = self.slots[len(self.used_stamps)]
            self.used_stamps.append(name)
            self.k(f"{'s_memrealtime' if self.dbg else 's_memtime'} s[{s}:{s + 1}]")

    def capture(self, fn):
        k = self.k
        save = k.ins
        k.ins = []
        fn()
        r = k.ins
        k.ins = save
        return r

    def poll(self, loads, checks):
        k = self.k
        slow, ret = k.lab("poll"), k.lab("ret")
        self._cmp(checks, k)
        k(f"s_cbranch_vccnz {slow}")
        k(f"{ret}:")
        t = [f"{slow}:", f"s_mov_b32 s{sCNT}, 0", f"{slow}_l:", "s_sleep 1"] + loads + ["s_waitcnt vmcnt(0)"]
        p = Prog()
        self._cmp(checks, p)
        t += [i.text for i in p.finalize()]
        t += ["s_nop 1", f"s_cbranch_vccz {ret}", f"s_add_u32 s{sCNT}, s{sCNT}, 1", f"s_cmp_lt_u32 s{sCNT}, 0x40000",
              f"s_cbranch_scc1 {slow}_l", "s_endpgm"]
        k.tail += t

    def _cmp(self, checks, k):
        k(f"v_cmp_ne_u32 vcc, s{sT}, v{checks[0]}")
        for c in checks[1:]:
            k(f"v_cmp_ne_u32 s[0:1], s{sT}, v{c}")
            k("s_or_b64 vcc, vcc, s[0:1]")

    def unpack(self, dst, src, n):
        for q in range(n):
            self.k(f"v_lshlrev_b32 v{dst + 2 * q}, 16, v{src + q}")
            self.k(f"v_and_b32 v{dst + 2 * q + 1}, s{sHI}, v{src + q}")

    def p0(self):
        k = self.k
        k("s_cmp_ge_u32 s2, 256\ns_cbranch_scc1 L_end")
        k(f"s_load_dwordx2 s[{SC}:{SC + 1}], s[0:1], 48")
        k(f"s_load_dwordx2 s[{SMOD}:{SMOD + 1}], s[0:1], 56")
        k(f"s_load_dwordx2 s[{SX}:{SX + 1}], s[0:1], 0")
        k(f"s_load_dwordx2 s[{SWQ}:{SWQ + 1}], s[0:1], 8")
        k(f"s_load_dwordx2 s[{SWS}:{SWS + 1}], s[0:1], 80")
        self.stamp("start")
        if self.dbg:
            k(f"s_load_dwordx2 s[{SC_DBG}:{SC_DBG + 1}], s[0:1], 72")
        k("v_lshrrev_b32 v1, 6, v0\nv_and_b32 v0, 63, v0")
        k(f"s_and_b32 s{sA}, s2, 7\ns_lshl_b32 s{sA}, s{sA}, 2\ns_lshr_b32 s{sG}, s2, 6\ns_add_u32 s{sG}, s{sG}, s{sA}")
        k(f"v_readfirstlane_b32 s{sW}, v1")
        k(f"s_bfe_u32 s{sJ}, s2, 0x30003")
        for r, n in ((SC, 1024), (SMOD, 3145728), (SX, 2097152), (SWQ, 1572864), (SWS, WSZ)):
            k(f"s_mov_b32 s{r + 2}, {hx(n)}\ns_mov_b32 s{r + 3}, 0x20000")
        k(f"s_mov_b32 s{sHI}, 0xffff0000")
        k(f"s_lshl_b32 s{sHEAD}, s{sJ}, 2\ns_add_u32 s{sHEAD}, s{sHEAD}, s{sW}")
        k(f"s_and_b32 s{sA}, s{sG}, 1\ns_lshl_b32 s{sA}, s{sA}, 4\ns_lshr_b32 s{sB}, s{sG}, 1\ns_add_u32 s{sA}, s{sA}, s{sB}")
        k(f"s_add_u32 s{sB}, s{sG}, 32\ns_cmp_eq_u32 s{sJ}, 4\ns_cselect_b32 s{sSTRIP}, s{sB}, 99")
        k(f"s_cmp_eq_u32 s{sJ}, 3\ns_cselect_b32 s{sSTRIP}, s{sA}, s{sSTRIP}")
        k("v_lshlrev_b32 v2, 4, v0\nv_lshrrev_b32 v3, 3, v0\nv_and_b32 v4, 7, v0")
        k("s_waitcnt lgkmcnt(0)")
        k(f"s_load_dword s{sT}, s[{SWS}:{SWS + 1}], {EPOCH}")
        k(f"s_load_dwordx2 s[{SWO}:{SWO + 1}], s[0:1], 16")
        k(f"s_load_dwordx2 s[{SW1}:{SW1 + 1}], s[0:1], 32")
        k(f"s_load_dwordx2 s[{SW2}:{SW2 + 1}], s[0:1], 40")
        k(f"s_load_dwordx2 s[{SOUT}:{SOUT + 1}], s[0:1], 64")
        k(f"s_cmp_ge_u32 s{sSTRIP}, 48\ns_cbranch_scc1 L_np0")
        k.opt = "prod"
        k(f"v_lshlrev_b32 v5, 2, v0\ns_lshl_b32 s{sA}, s{sW}, 8")
        k(f"buffer_load_dword v248, v5, {srd(SC)}, s{sA} offen")
        k(f"v_mul_u32_u24 v5, {16 * 6144}, v3\nv_lshl_add_u32 v5, v4, 4, v5")
        k(f"s_mul_i32 s{sA}, s{sW}, {128 * 6144}\ns_lshl_b32 s{sB}, s{sSTRIP}, 7\ns_add_u32 s{sA}, s{sA}, s{sB}")
        for i in range(16):
            k(f"buffer_load_dwordx4 {v(176 + 4 * i, 4)}, v5, {srd(SMOD)}, s{sA} offen")
            if i < 15:
                k(f"s_addk_i32 s{sA}, 6144")
        k.opt = False
        k("L_np0:")
        k(f"v_lshlrev_b32 v5, 7, v0\ns_lshl_b32 s{sA}, s{sG}, 16\ns_lshl_b32 s{sB}, s{sJ}, 13\ns_add_u32 s{sA}, s{sA}, s{sB}")
        k(f"s_cmp_eq_u32 s{sW}, 0\ns_cselect_b32 s{sA}, s{sA}, 0x1000000")
        k(f"buffer_load_dword v249, v5, {srd(SX)}, s{sA} offen", tag="touch")
        k(f"v_and_b32 v5, 15, v0\nv_mul_u32_u24 v5, 3072, v5\nv_lshrrev_b32 v6, 4, v0\nv_lshl_add_u32 v5, v6, 10, v5")
        k(f"v_cmp_gt_u32 vcc, 48, v0\nv_mov_b32 v6, 0x1000000\nv_cndmask_b32 v5, v6, v5, vcc")
        k(f"s_mul_i32 s{sA}, s{sG}, {16 * 3072}\ns_lshl_b32 s{sB}, s{sJ}, 7\ns_add_u32 s{sA}, s{sA}, s{sB}")
        k(f"s_cmp_eq_u32 s{sW}, 1\ns_cselect_b32 s{sA}, s{sA}, 0x1000000")
        k(f"buffer_load_dword v250, v5, {srd(SWQ)}, s{sA} offen", tag="touch")
        k(f"s_cmp_lg_u32 s{sW}, 2\ns_cbranch_scc1 L_nc")
        k.opt = "code"
        k(f"s_getpc_b64 s[{sE}:{sE + 1}]\nL_pc:")
        k(f"s_lshr_b32 s{sA}, s2, 3\ns_lshl_b32 s{sA}, s{sA}, 11\nv_and_b32 v5, 15, v0\nv_lshl_add_u32 v5, v5, 7, s{sA}")
        k("v_min_u32 v5, L_fastend-L_pc, v5")
        k(f"global_load_dword v251, v5, s[{sE}:{sE + 1}]", tag="touch")
        k.opt = False
        k("L_nc:")
        k(f"s_lshl_b32 s{sA}, s{sG}, 16\ns_lshl_b32 s{sB}, s{sW}, 14\ns_add_u32 s{sA}, s{sA}, s{sB}")
        for r in range(16):
            k(f"buffer_load_dwordx4 {v(16 + 8 * r + 4, 4)}, v2, {srd(SX)}, s{sA} offen offset:{(r & 3) * 1024}")
            if r & 3 == 3 and r < 15:
                k(f"s_addk_i32 s{sA}, 4096")
        k("v_bfe_u32 v5, v0, 4, 1\nv_lshrrev_b32 v6, 1, v4\nv_xor_b32 v5, v5, v6\nv_lshlrev_b32 v5, 5, v5")
        k("v_and_b32 v6, 1, v0\nv_lshl_add_u32 v5, v6, 4, v5\nv_mul_u32_u24 v6, 3072, v3\nv_add_u32 v8, v5, v6")
        k(f"v_xor_b32 v9, 64, v5\nv_add_u32 v9, v9, v6\nv_add_u32 v9, {24576 - 1024}, v9")
        k(f"v_add_u32 v10, {2 * (24576 - 1024)}, v8\nv_add_u32 v11, {2 * (24576 - 1024)}, v9")
        k(f"s_mul_i32 s{sD}, s{sW}, {32 * 3072}\ns_lshl_b32 s{sB}, s{sJ}, 7\ns_add_u32 s{sD}, s{sD}, s{sB}\ns_lshl_b32 s{sC_}, s{sW}, 12")
        for i in range(4):
            for b in self.wq_block(1, i, L_H + i * 16384, "wk"):
                k.add(b)
        for i in range(4):
            for b in self.wq_block(2, i, L_S1 + i * 16384, "wv"):
                k.add(b)
        for b in self.wq_block(0, 3, L_S2, "wq1"):
            k.add(b)
        for r, n in ((SWO, 524288), (SW1, 1409024), (SW2, 1409024), (SOUT, 2097152)):
            k(f"s_mov_b32 s{r + 2}, {hx(n)}\ns_mov_b32 s{r + 3}, 0x20000")
        k.drain_lgkm()
        k(f"s_add_u32 s{sT}, s{sT}, {hx(TAGC)}")
        self.stamp("issued")
        k(f"s_cmp_ge_u32 s{sSTRIP}, 48\ns_cbranch_scc1 L_np1")
        k.opt = "prod"
        self.unpack(252, 248, 1)
        for r in (252, 253):
            k(f"v_mul_f32 v{r + 2}, {hx(f2u(-LOG2E))}, v{r}")
        for r in (254, 255):
            k(f"v_exp_f32 v{r}, v{r}")
        for r in (254, 255):
            k(f"v_add_f32 v{r}, 1.0, v{r}")
        for r in (254, 255):
            k(f"v_rcp_f32 v{r}, v{r}")
        for r in (252, 253):
            k(f"v_mul_f32 v{r}, v{r}, v{r + 2}")
        k("v_cvt_pk_bf16_f32 v248, v252, v253")
        self.unpack(252, 248, 1)
        k(f"s_lshl_b32 s{sA}, s{sW}, 9\nv_lshl_add_u32 v5, v0, 3, s{sA}\nv_lshl_add_u32 v6, v3, 6, s{sA}")
        k(f"ds_write_b64 v5, v[252:253] offset:{L_SIL}")
        k.drain_lgkm()
        for q in range(4):
            k(f"ds_read_b128 {v(144 + 4 * q, 4)}, v6 offset:{L_SIL + 16 * q}")
        for i in range(16):
            t = 160 if i & 1 else 168
            self.unpack(t, 176 + 4 * i, 4)
            sp = v(144 + (i & ~1), 2)
            sel = i & 1
            for q in range(4):
                if i == 0:
                    k(f"v_pk_mul_f32 {v(240 + 2 * q, 2)}, {v(t + 2 * q, 2)}, {sp} op_sel:[0,{sel}] op_sel_hi:[1,{sel}]")
                else:
                    k(f"v_pk_fma_f32 {v(240 + 2 * q, 2)}, {v(t + 2 * q, 2)}, {sp}, {v(240 + 2 * q, 2)} op_sel:[0,{sel},0] op_sel_hi:[1,{sel},1]")
        for q in range(4):
            k(f"v_permlane32_swap_b32 v{240 + q}, v{244 + q}")
        for q in range(4):
            k(f"v_add_f32 v{240 + q}, v{240 + q}, v{244 + q}")
        for q in range(2):
            k(f"v_permlane16_swap_b32 v{240 + q}, v{242 + q}")
        for q in range(2):
            k(f"v_add_f32 v{240 + q}, v{240 + q}, v{242 + q}")
        for q in range(2):
            k(f"v_add_f32_dpp v{240 + q}, v{240 + q}, v{240 + q} row_ror:8 row_mask:0xf bank_mask:0xf")
        k(f"ds_write_b64 v5, v[240:241] offset:{L_MRED}")
        k.barrier()
        k(f"s_cmp_lg_u32 s{sW}, 0\ns_cbranch_scc1 L_np1")
        k.opt = "prod0"
        for q in range(4):
            k(f"ds_read_b64 {v(240 + 2 * q, 2)}, v5 offset:{L_MRED + 512 * q}")
        k(f"s_lshr_b32 s{sA}, s{sSTRIP}, 3\ns_cmp_eq_u32 s{sA}, 1\ns_cselect_b32 s{sB}, 1.0, 0\ns_cmp_eq_u32 s{sA}, 4\ns_cselect_b32 s{sB}, 1.0, s{sB}")
        k("v_lshlrev_b32 v6, 2, v4\nv_lshrrev_b32 v7, 5, v0\nv_lshl_add_u32 v6, v7, 1, v6\nv_bfe_u32 v7, v0, 4, 1\nv_add_u32 v6, v6, v7\nv_lshlrev_b32 v6, 3, v6")
        k(f"s_lshl_b32 s{sA}, s{sSTRIP}, 8\ns_add_u32 s{sA}, s{sA}, {MODG}")
        k("v_pk_add_f32 v[240:241], v[240:241], v[242:243]\nv_pk_add_f32 v[244:245], v[244:245], v[246:247]\nv_pk_add_f32 v[240:241], v[240:241], v[244:245]")
        k("v_cvt_pk_bf16_f32 v240, v240, v241")
        self.unpack(242, 240, 1)
        k(f"v_add_f32 v242, s{sB}, v242\nv_add_f32 v243, s{sB}, v243\nv_cvt_pk_bf16_f32 v240, v242, v243\nv_mov_b32 v241, s{sT}")
        k("s_mov_b32 exec_lo, 0x00ff00ff\ns_mov_b32 exec_hi, 0x00ff00ff")
        k(f"buffer_store_dwordx2 v[240:241], v6, {srd(SWS)}, s{sA} offen sc1")
        k("s_mov_b64 exec, -1")
        k.opt = False
        k("L_np1:")
        self.stamp("strip")

    def wq_block(self, part, i, lds, tag):
        r = [Inst(f"s_add_u32 m0, s{sC_}, {lds}"),
             Inst(f"s_add_u32 s{sA}, s{sD}, {part * 1024 + i * 4 * 32 * 3072}")]
        for q in range(4):
            r.append(Inst(f"buffer_load_dwordx4 v{8 + q}, {srd(SWQ)}, s{sA} offen offset:{q * 1024} lds", tag))
        return r

    def p1_ln(self):
        k = self.k
        ONE = 0x3F803F80
        k(f"s_mov_b32 s{sB}, {hx(ONE)}")
        S, Q = 144, 160
        for r in range(16):
            x = 16 + 8 * r
            for q in range(4):
                k(f"v_dot2_f32_bf16 v{S + r}, v{x + 4 + q}, s{sB}, {'0' if q == 0 else 'v%d' % (S + r)}")
            for q in range(4):
                k(f"v_dot2_f32_bf16 v{Q + r}, v{x + 4 + q}, v{x + 4 + q}, {'0' if q == 0 else 'v%d' % (Q + r)}")
            self.unpack(x, x + 4, 4)
        for B in (S, Q):
            for r in range(8):
                k(f"v_permlane32_swap_b32 v{B + r}, v{B + r + 8}")
        for B in (S, Q):
            for r in range(8):
                k(f"v_add_f32 v{B + r}, v{B + r}, v{B + r + 8}")
        for B in (S, Q):
            for r in range(4):
                k(f"v_permlane16_swap_b32 v{B + r}, v{B + r + 4}")
        for B in (S, Q):
            for r in range(4):
                k(f"v_add_f32 v{B + r}, v{B + r}, v{B + r + 4}")
        for sh in (8, 4, 2, 1):
            for B in (S, Q):
                for r in range(4):
                    k(f"v_add_f32_dpp v{B + r}, v{B + r}, v{B + r} row_ror:{sh} row_mask:0xf bank_mask:0xf")
        T = 176
        k(f"s_mov_b32 s{sA}, {hx(f2u(1.0 / 512))}")
        for r in range(4):
            k(f"v_mul_f32 v{S + r}, s{sA}, v{S + r}")
        for r in range(4):
            k(f"v_mul_f32 v{T + r}, v{S + r}, v{S + r}")
        for r in range(4):
            k(f"v_fma_f32 v{Q + r}, v{Q + r}, s{sA}, -v{T + r}")
        for r in range(4):
            k(f"v_max_f32 v{Q + r}, 0, v{Q + r}")
        for r in range(4):
            k(f"v_add_f32 v{Q + r}, {hx(f2u(1e-5))}, v{Q + r}")
        for r in range(4):
            k(f"v_rsq_f32 v{T + r}, v{Q + r}")
        for r in range(4):
            k(f"v_mul_f32_e64 v{T + 4 + r}, -v{S + r}, v{T + r}")
        RS = lambda row, e: 144 + 2 * row + e
        for e in range(2):
            for r in range(4):
                k(f"v_mov_b32 v{RS(r, e)}, v{T + 4 * e + r}\nv_mov_b32 v{RS(r + 4, e)}, v{T + 4 * e + r}")
        for e in range(2):
            for r in range(4):
                k(f"v_permlane16_swap_b32 v{RS(r, e)}, v{RS(r + 4, e)}")
        for e in range(2):
            for r in range(8):
                k(f"v_mov_b32 v{RS(r + 8, e)}, v{RS(r, e)}")
        for e in range(2):
            for r in range(8):
                k(f"v_permlane32_swap_b32 v{RS(r, e)}, v{RS(r + 8, e)}")
        for r in range(16):
            x = 16 + 8 * r
            for q in range(4):
                k(f"v_pk_fma_f32 {v(x + 2 * q, 2)}, {v(x + 2 * q, 2)}, {v(RS(r, 0), 2)}, {v(RS(r, 0), 2)} op_sel:[0,0,1] op_sel_hi:[1,0,1]")
        self.stamp("lnprep")
        k(f"s_lshl_b32 s{sA}, s{sW}, 10\ns_add_u32 s{sF}, s{sA}, {MODG}")
        ld = f"buffer_load_dwordx4 v[144:147], v2, {srd(SWS)}, s{sF} offen sc1"
        k(ld)
        k(f"v_bfe_u32 v5, v0, 3, 2\nv_xor_b32 v5, s{sW}, v5\nv_lshlrev_b32 v5, 5, v5\nv_and_b32 v6, 3, v0\nv_lshl_add_u32 v5, v6, 3, v5")
        k("v_lshrrev_b32 v6, 4, v0\nv_lshl_add_u32 v5, v6, 10, v5\nv_bfe_u32 v6, v0, 2, 2\nv_lshl_add_u32 v12, v6, 7, v5")
        k(f"v_add_u32 v13, {L_S1}, v12\nv_add_u32 v12, {L_H}, v12")
        k.wait_vm("wk")
        k("s_barrier")
        for ks in range(16):
            for u in range(2):
                k(f"ds_read_b64_tr_b16 {v(176 + 4 * ks + 2 * u, 2)}, v12 offset:{ks * 4096 + u * 512}")
        k(f"s_getreg_b32 s{sA}, hwreg(HW_REG_XCC_ID, 0, 4)\nv_mov_b32 v148, s{sA}\nv_mov_b32 v149, s{sT}")
        k(f"v_cmp_eq_u32 vcc, 0, v0\nv_mov_b32 v14, {hx(OOB)}\nv_cndmask_b32 v14, v14, 0, vcc")
        k(f"s_lshl_b32 s{sA}, s2, 3\ns_add_u32 s{sA}, s{sA}, {ARR}\ns_cmp_eq_u32 s{sW}, 0\ns_cselect_b32 s{sA}, s{sA}, {hx(OOB)}")
        self.poll([ld], [145, 147])
        k(f"buffer_store_dwordx2 v[148:149], v14, {srd(SWS)}, s{sA} offen sc1")
        k(f"v_mov_b32 v145, v146\ns_lshl_b32 s{sA}, s{sW}, 9\nv_lshl_add_u32 v5, v0, 3, s{sA}")
        k(f"ds_write_b64 v5, v[144:145] offset:{L_MODB}")
        k.barrier()
        self.stamp("mod")
        k(f"ds_read_b128 v[144:147], v2 offset:{L_MODB}\nds_read_b128 v[148:151], v2 offset:{L_MODB + 1024}")
        k(f"s_lshl_b32 s{sA}, s{sW}, 14\ns_add_u32 s{sA}, s{sA}, {L_H}\nv_add_u32 v5, s{sA}, v2")
        self.unpack(240, 144, 4)
        self.unpack(248, 148, 4)
        for r in range(16):
            x = 16 + 8 * r
            for q in range(4):
                k(f"v_pk_fma_f32 {v(x + 2 * q, 2)}, {v(x + 2 * q, 2)}, {v(248 + 2 * q, 2)}, {v(240 + 2 * q, 2)}")
            k(f"v_xor_b32 v{6 + (r & 1)}, {r * 16}, v5")
            for q in range(4):
                k(f"v_cvt_pk_bf16_f32 v{x + q}, v{x + 2 * q}, v{x + 2 * q + 1}")
            k(f"ds_write_b128 v{6 + (r & 1)}, {v(x, 4)} offset:{r * 1024}")
        k(f"v_and_b32 v1, 15, v0\nv_lshrrev_b32 v3, 4, v0\nv_xor_b32 v3, v3, v1\nv_lshlrev_b32 v1, 10, v1\nv_lshl_add_u32 v4, v3, 4, v1\nv_add_u32 v4, {L_H}, v4")
        k.wait_vm("wv")
        k.barrier()
        k("v_xor_b32 v5, 64, v4\nv_xor_b32 v6, 128, v4\nv_xor_b32 v7, 192, v4")
        self.stamp("h")

    KL, VL, QF, KH = 176, 184, 200, 208
    VH = 192

    def hfrag(self, T, ks):
        return a_((ks * 4 + T) * 4, 4)

    def p1_gemm(self):
        k = self.k
        aK, aV, aQ = 144, 160, 240
        rd = [f"ds_read_b128 {self.hfrag(T, ks)}, v{4 + (ks & 3)} offset:{(ks >> 2) * 256 + T * 16384}" for ks in range(16) for T in range(4)]
        wv = [f"ds_read_b64_tr_b16 {v(16 + 4 * ks + 2 * u, 2)}, v13 offset:{ks * 4096 + u * 512}" for ks in range(16) for u in range(2)]
        PRE = 6
        for i in range(PRE):
            k(rd[i])
        for i in range(64):
            ks, T = i >> 2, i & 3
            k(f"{M16} {v(aK + 4 * T, 4)}, {v(176 + 4 * ks, 4)}, {self.hfrag(T, ks)}, {'0' if ks == 0 else v(aK + 4 * T, 4)}")
            if i + PRE < 64:
                k(rd[i + PRE])
            if i & 1:
                k(wv[i >> 1])
        k.wait_vm("wq1")
        k.barrier()
        self.stamp("kdone")
        bg = [self.wq_block(0, i, L_S1 + i * 16384, "wq2") for i in (2, 1, 0)]
        for atom in bg:
            for b in atom:
                k.add(b)
        for T in range(4):
            for p in range(2):
                k(f"v_cvt_pk_bf16_f32 v{self.KL + 2 * T + p}, v{aK + 4 * T + 2 * p}, v{aK + 4 * T + 2 * p + 1}")
        k(f"s_lshl_b32 s{sA}, s{sG}, 5\ns_add_u32 s{sF}, s{sA}, s{sHEAD}")
        k(f"s_lshl_b32 s{sA}, s{sF}, 11\ns_add_u32 s{sB}, s{sA}, {VB}\ns_add_u32 s{sA}, s{sA}, {KB}")
        for t in range(2):
            for p in range(2):
                k(f"v_permlane16_swap_b32 v{self.KL + 4 * t + p}, v{self.KL + 4 * t + 2 + p}")
        for t in range(2):
            k(f"buffer_store_dwordx4 {v(self.KL + 4 * t, 4)}, v2, {srd(SWS)}, s{sA} offen offset:{t * 1024} sc1", tag="kst")
        k(f"v_mov_b32 v15, s{sT}")
        k(f"s_lshl_b32 s{sF}, s{sF}, 7")
        for i in range(64):
            ks, T = i >> 2, i & 3
            k(f"{M16} {v(aV + 4 * T, 4)}, {self.hfrag(T, ks)}, {v(16 + 4 * ks, 4)}, {'0' if ks == 0 else v(aV + 4 * T, 4)}")
            if i == 44:
                k.wait_vm("kst")
                k(f"s_add_u32 s{sA}, s{sF}, {KFL}")
                k(f"buffer_store_dword v15, v14, {srd(SWS)}, s{sA} offen sc1")
        k(f"v_add_u32 v12, {L_S2 - L_H}, v12")
        for ks in (15, 14, 13, 12):
            for u in range(2):
                k(f"ds_read_b64_tr_b16 {v(80 + 4 * ks + 2 * u, 2)}, v12 offset:{(ks - 12) * 4096 + u * 512}")
        self.stamp("vdone")
        k(f"v_and_b32 v1, 15, v0\nv_lshrrev_b32 v3, 5, v0\nv_lshl_add_u32 v1, v3, 4, v1\nv_lshlrev_b32 v1, 4, v1")
        k(f"v_and_b32 v3, 16, v0\nv_lshl_add_u32 v1, v3, 20, v1")
        for T in range(4):
            f = self.VL + 4 * T
            for p in range(2):
                k(f"v_cvt_pk_bf16_f32 v{f + p}, v{aV + 4 * T + 2 * p}, v{aV + 4 * T + 2 * p + 1}")
                k(f"v_mov_b32 v{f + 2 + p}, 0x3f803f80")
        for T in range(4):
            for p in range(2):
                k(f"v_permlane16_swap_b32 v{self.VL + 4 * T + p}, v{self.VL + 4 * T + 2 + p}")
        for T in range(4):
            for p in range(2):
                k(f"v_permlane32_swap_b32 v{self.VL + 4 * T + p}, v{self.VL + 4 * T + 2 + p}")
        for T in range(4):
            k(f"buffer_store_dwordx4 {v(self.VL + 4 * T, 4)}, v1, {srd(SWS)}, s{sB} offen offset:{T * 512} sc1", tag="vst")
        k.wait_vm("wq2")
        k.barrier()
        wq = [f"ds_read_b64_tr_b16 {v(80 + 4 * ks + 2 * u, 2)}, v13 offset:{ks * 4096 + u * 512}" for ks in range(11, -1, -1) for u in range(2)]
        for i in range(64):
            ks, T = 15 - (i >> 2), i & 3
            k(f"{M16} {v(aQ + 4 * T, 4)}, {v(80 + 4 * ks, 4)}, {self.hfrag(T, ks)}, {'0' if ks == 15 else v(aQ + 4 * T, 4)}")
            if i < len(wq):
                k(wq[i])
            if i == 44:
                k.wait_vm("vst")
                k(f"s_add_u32 s{sA}, s{sF}, {VFL}")
                k(f"buffer_store_dword v15, v14, {srd(SWS)}, s{sA} offen sc1")
        k(f"s_mov_b32 s{sA}, {hx(f2u(0.25 * LOG2E))}")
        for r in range(16):
            k(f"v_mul_f32 v{aQ + r}, s{sA}, v{aQ + r}")
        for T in range(4):
            for p in range(2):
                k(f"v_cvt_pk_bf16_f32 v{self.QF + 2 * T + p}, v{aQ + 4 * T + 2 * p}, v{aQ + 4 * T + 2 * p + 1}")
        for t in range(2):
            for p in range(2):
                k(f"v_permlane16_swap_b32 v{self.QF + 4 * t + p}, v{self.QF + 4 * t + 2 + p}")
        self.stamp("qdone")


    def setup_rowdma(self):
        k = self.k
        k("v_lshrrev_b32 v3, 3, v0\nv_bfe_u32 v5, v0, 4, 1\nv_lshlrev_b32 v5, 2, v5\nv_and_b32 v6, 7, v0\nv_xor_b32 v5, v5, v6")
        k("v_lshlrev_b32 v5, 4, v5\nv_lshl_add_u32 v8, v3, 10, v5")
        k("v_add_u32 v9, 7168, v8\nv_add_u32 v10, 14336, v8\nv_add_u32 v11, 21504, v8")

    def rowdma(self, S, sbase, goff, slds, lds, tag, n=4):
        r = [Inst(f"s_add_u32 m0, s{slds}, {lds}"), Inst(f"s_add_u32 s{sA}, s{sbase}, {goff}")]
        for q in range(n):
            r.append(Inst(f"buffer_load_dwordx4 v{8 + q}, {srd(S)}, s{sA} offen offset:{q * 1024} lds", tag))
        return r

    def w1dma(self, ks, lds, tag):
        r = [Inst(f"s_add_u32 m0, s{self.sW3K}, {lds}"), Inst(f"s_add_u32 s{sA}, s{self.sW1B}, {ks * 32 * 2752}")]
        for cb in range(3):
            r.append(Inst(f"buffer_load_dwordx4 v{4 + cb}, {srd(SW1)}, s{sA} offen offset:{cb * 1024} lds", tag))
        return r

    def w1read(self, ks, off):
        return [Inst(f"ds_read_b64_tr_b16 {a_(64 + 12 * ks + 4 * f + 2 * u, 2)}, v{240 + f} offset:{off + u * 3072}") for f in range(3) for u in range(2)]

    sW1B, sW3K, sROWB, sW16K, sGX, sST16, sXCC, sW2B = 32, 33, 34, 35, 36, 37, 38, 39
    X1 = 16
    SA, SB, SM, NEGM, OA, PP, MB, OFA = 32, 48, 64, 80, 96, 112, 136, 144
    R_WO = POOL
    R_A = POOL + 65536
    R_X = POOL + 65536 + 73728
    RED = POOL + 65536 + 61440

    def p2_setup(self):
        k = self.k
        k(f"s_mul_i32 s{sA}, s{sJ}, 5\ns_min_u32 s{sB}, s{sJ}, 3\ns_add_u32 s{sA}, s{sA}, s{sB}\ns_lshl_b32 s{self.sST16}, s{sA}, 1")
        k(f"s_lshl_b32 s{sA}, s{self.sST16}, 5\ns_mul_i32 s{sB}, s{sW}, {8 * 2752}\ns_add_u32 s{sA}, s{sA}, s{sB}\ns_add_u32 s{self.sW1B}, s{sA}, {2048 - 1792}")
        k(f"s_sub_u32 s{SW1}, s{SW1}, 2048\ns_subb_u32 s{SW1 + 1}, s{SW1 + 1}, 0\ns_mov_b32 s{SW1 + 2}, {1409024 + 2048}")
        k(f"s_mul_i32 s{self.sW3K}, s{sW}, 3072\ns_lshl_b32 s{self.sW16K}, s{sW}, 14")
        k(f"s_lshl_b32 s{sA}, s{sW}, 17\ns_lshl_b32 s{sB}, s{sJ}, 7\ns_add_u32 s{self.sROWB}, s{sA}, s{sB}")
        k(f"s_mul_i32 s{sA}, s{sW}, {352 * 1024}\ns_add_u32 s{self.sW2B}, s{sA}, s{sB}")
        k(f"s_lshl_b32 s{self.sGX}, s{sG}, 1")
        k.barrier()
        self.setup_rowdma()
        k(f"v_and_b32 v3, 3, v0\nv_sub_u32 v3, s{sG}, v3\nv_add_u32 v3, -1, v3\nv_cmp_gt_i32 vcc, 0, v3\nv_mov_b32 v5, s{sG}\nv_cndmask_b32 v3, v3, v5, vcc\nv_lshlrev_b32 v3, 12, v3")
        k(f"s_lshl_b32 s{sA}, s{sHEAD}, 7\ns_add_u32 s{sF}, s{sA}, {KFL}\ns_add_u32 s{sD}, s{sA}, {VFL}")
        ldk = f"buffer_load_dword v5, v3, {srd(SWS)}, s{sF} offen sc1"
        k(ldk)
        k(f"v_and_b32 v6, 7, v0\nv_lshlrev_b32 v13, 2, v6\nv_lshlrev_b32 v6, 6, v6\ns_andn2_b32 s{sA}, s2, 0x38\ns_lshl_b32 s{sA}, s{sA}, 3\ns_add_u32 s{sC_}, s{sA}, {ARR}")
        lda = f"buffer_load_dwordx2 v[32:33], v6, {srd(SWS)}, s{sC_} offen sc1"
        k(lda)
        k(f"s_lshl_b32 s{sA}, s{sW}, 11\ns_add_u32 s{sB}, s{sA}, {MODG + 4096}")
        ldm = [f"buffer_load_dwordx4 {v(36 + 4 * q, 4)}, v2, {srd(SWS)}, s{sB} offen offset:{q * 1024} sc1" for q in range(2)]
        k("\n".join(ldm))
        for g in range(4):
            for b in self.rowdma(SWO, self.sROWB, g * 32768, self.sW16K, self.R_WO + g * 4096, "wo"):
                k.add(b)
        k("v_and_b32 v12, 31, v0\nv_lshrrev_b32 v7, 5, v0\nv_lshlrev_b32 v7, 2, v7\nv_sub_u32 v12, v12, v7")
        for r in range(16):
            k(f"v_cmp_le_i32 s[{SMASK + 2 * r}:{SMASK + 2 * r + 1}], {8 * (r >> 2) + (r & 3)}, v12")
        k(f"v_mov_b32 v7, 0xffff\nv_mov_b32 v12, s{sHI}")
        for p in range(8):
            k(f"v_cndmask_b32 v{self.MB + p}, 0, v7, s[{SMASK + 4 * p}:{SMASK + 4 * p + 1}]")
            k(f"v_cndmask_b32 v{self.PP + p}, 0, v12, s[{SMASK + 4 * p + 2}:{SMASK + 4 * p + 3}]")
        for p in range(8):
            k(f"v_or_b32 v{self.MB + p}, v{self.MB + p}, v{self.PP + p}")
        for m in range(4):
            k(f"s_cmp_ge_u32 s{sG}, {4 - m}\ns_cselect_b32 s{sA}, 0x3f803f80, 0\nv_mov_b32 v7, s{sA}")
            for r in range(16):
                k(f"v_accvgpr_write_b32 a{self.VH + 16 * m + r}, v7")
        self.poll([ldk], [5])
        self.stamp("kflag")
        k(f"s_lshl_b32 s{sA}, s{sG}, 5\ns_add_u32 s{sA}, s{sA}, s{sHEAD}\ns_lshl_b32 s{sE}, s{sA}, 11")
        for m in range(4):
            k(f"s_add_u32 s{sA}, s{sE}, {KB + (m - 4) * 65536}\ns_cmp_ge_u32 s{sG}, {4 - m}\ns_cselect_b32 s{sA}, s{sA}, {hx(OOB)}")
            for t in range(2):
                k(f"buffer_load_dwordx4 {v(self.KH + 8 * m + 4 * t, 4)}, v2, {srd(SWS)}, s{sA} offen offset:{t * 1024} sc1")
        ldv = f"buffer_load_dword v5, v3, {srd(SWS)}, s{sD} offen sc1"
        k(ldv)
        self.poll([lda], [33])
        k(f"s_getreg_b32 s{sA}, hwreg(HW_REG_XCC_ID, 0, 4)\nv_cmp_ne_u32 vcc, s{sA}, v32\ns_cmp_lg_u64 vcc, 0\ns_cselect_b32 s3, 1, 0")
        self.poll(ldm, [37, 39, 41, 43])
        k(f"v_mov_b32 v37, v38\nv_mov_b32 v41, v42\ns_lshl_b32 s{sA}, s{sW}, 10\nv_lshl_add_u32 v7, v0, 3, s{sA}")
        k(f"ds_write_b64 v7, v[36:37] offset:{L_MODB + 2048}\nds_write_b64 v7, v[40:41] offset:{L_MODB + 2048 + 512}")
        k(f"v_bfe_u32 v7, v0, 3, 1\ns_lshr_b32 s{sA}, s{sW}, 1\nv_xor_b32 v7, s{sA}, v7\nv_lshlrev_b32 v7, 6, v7")
        k(f"v_bfe_u32 v12, v0, 4, 1\ns_and_b32 s{sA}, s{sW}, 1\nv_xor_b32 v12, s{sA}, v12\nv_lshl_add_u32 v7, v12, 5, v7")
        k("v_and_b32 v12, 3, v0\nv_lshl_add_u32 v7, v12, 3, v7\nv_bfe_u32 v12, v0, 2, 2\nv_lshl_add_u32 v7, v12, 7, v7\nv_lshrrev_b32 v12, 5, v0")
        k(f"v_lshl_add_u32 v244, v12, 9, v7\nv_lshl_add_u32 v246, v12, 10, v7\ns_add_u32 s{sA}, s{self.sW16K}, {self.R_WO}\nv_add_u32 v244, s{sA}, v244\nv_xor_b32 v245, 64, v244")
        self.poll([ldv], [5])
        self.stamp("vflag")
        k("s_mov_b32 exec_lo, 0xffff\ns_mov_b32 exec_hi, 0xffff")
        for m in range(4):
            k(f"s_add_u32 s{sA}, s{sE}, {VB + (m - 4) * 65536}\ns_cmp_ge_u32 s{sG}, {4 - m}\ns_cselect_b32 s{sA}, s{sA}, {hx(OOB)}")
            for T in range(4):
                k(f"buffer_load_dwordx4 {a_(self.VH + 16 * m + 4 * T, 4)}, v1, {srd(SWS)}, s{sA} offen offset:{T * 512} sc1")
        k("s_mov_b64 exec, -1")
        k.wait_vm("wo")
        for s_ in range(8):
            for p in range(2):
                for u in range(2):
                    k(f"ds_read_b64_tr_b16 {a_((s_ * 2 + p) * 4 + 2 * u, 2)}, v{244 + p} offset:{(16 * s_ + 8 * u) * 128}")
        k("v_lshrrev_b32 v7, 3, v0\nv_lshrrev_b32 v12, 4, v0\nv_and_b32 v4, 7, v0\nv_xor_b32 v4, v4, v12\nv_lshlrev_b32 v4, 4, v4\nv_lshl_add_u32 v4, v7, 10, v4")
        k("v_xor_b32 v5, 64, v4\nv_add_u32 v5, 7168, v5")
        k(f"s_lshl_b32 s{sA}, s{sW}, 11\ns_add_u32 m0, s{sA}, {self.R_X}\ns_lshl_b32 s{sA}, s{sG}, 16\ns_add_u32 s{sA}, s{sA}, s{self.sW16K}\ns_lshl_b32 s{sB}, s{sJ}, 7\ns_add_u32 s{sA}, s{sA}, s{sB}")
        k(f"buffer_load_dwordx4 v4, {srd(SX)}, s{sA} offen lds\nbuffer_load_dwordx4 v5, {srd(SX)}, s{sA} offen offset:1024 lds", tag="xr")
        k("v_lshrrev_b32 v7, 3, v0\nv_mul_u32_u24 v7, 2752, v7\nv_bfe_u32 v12, v0, 1, 2\nv_lshrrev_b32 v4, 4, v0\nv_xor_b32 v12, v12, v4\nv_lshl_add_u32 v7, v12, 5, v7")
        k("v_and_b32 v12, 1, v0\nv_lshl_add_u32 v6, v12, 4, v7\nv_add_u32 v5, 896, v6\nv_add_u32 v4, 1792, v6")
        k("v_lshrrev_b32 v7, 5, v0\nv_mul_u32_u24 v7, 6144, v7\nv_bfe_u32 v12, v0, 2, 3\nv_lshl_add_u32 v7, v12, 7, v7\nv_and_b32 v12, 3, v0\nv_lshl_add_u32 v7, v12, 3, v7\nv_bfe_u32 v12, v0, 3, 2")
        for f in range(3):
            k(f"s_mul_i32 s{sA}, s{sW}, 3\ns_add_u32 s{sA}, s{sA}, {f}\ns_and_b32 s{sB}, s{sA}, 3\ns_lshr_b32 s{sA}, s{sA}, 2\ns_lshl_b32 s{sA}, s{sA}, 10\ns_add_u32 s{sA}, s{sA}, {self.R_A}")
            k(f"v_xor_b32 v{240 + f}, s{sB}, v12\nv_lshl_add_u32 v{240 + f}, v{240 + f}, 5, v7\nv_add_u32 v{240 + f}, s{sA}, v{240 + f}")
        self.touch_ws()
        self.pre_stamps = list(self.used_stamps)
        if self.force_slow:
            k("s_branch L_slowmode")
        else:
            k("s_cmp_lg_u32 s3, 0\ns_cbranch_scc1 L_slowmode")

    def touch_ws(self):
        k = self.k
        k("v_lshlrev_b32 v7, 7, v0\nv_min_u32 v12, 0x380, v7")
        for X in range(2):
            k(f"s_add_u32 s{sA}, s{self.sGX}, {X}\ns_lshl_b32 s{sB}, s{sA}, 5\ns_add_u32 s{sB}, s{sB}, s{sHEAD}\ns_lshl_b32 s{sB}, s{sB}, 10\ns_add_u32 s{sB}, s{sB}, {OB}")
            k(f"buffer_load_dword v248, v12, {srd(SWS)}, s{sB} offen", tag="touch")
            k(f"s_lshl_b32 s{sB}, s{sA}, 1\ns_and_b32 s{sC_}, s{sW}, 1\ns_add_u32 s{sB}, s{sB}, s{sC_}\ns_lshl_b32 s{sB}, s{sB}, 4\ns_lshr_b32 s{sC_}, s{sHEAD}, 1\ns_add_u32 s{sB}, s{sB}, s{sC_}\ns_lshl_b32 s{sB}, s{sB}, 10\ns_add_u32 s{sB}, s{sB}, {YB}")
            k(f"buffer_load_dword v249, v12, {srd(SWS)}, s{sB} offen", tag="touch")
        k("v_min_u32 v12, 0xb80, v7")
        for X in range(2):
            k(f"s_add_u32 s{sA}, s{self.sGX}, {X}\ns_mul_i32 s{sA}, s{sA}, 88\ns_mul_i32 s{sB}, s{sW}, 3\ns_add_u32 s{sA}, s{sA}, s{sB}\ns_add_u32 s{sA}, s{sA}, s{self.sST16}\ns_lshl_b32 s{sA}, s{sA}, 10\ns_add_u32 s{sA}, s{sA}, {HB}")
            k(f"buffer_load_dword v250, v12, {srd(SWS)}, s{sA} offen", tag="touch")
        k(f"v_lshrrev_b32 v7, 1, v0\nv_lshlrev_b32 v7, 13, v7\nv_and_b32 v12, 1, v0\nv_lshl_add_u32 v7, v12, 7, v7\ns_lshl_b32 s{sA}, s{sG}, 8\ns_add_u32 s{sA}, s{sA}, {OFL}\nv_add_u32 v7, s{sA}, v7")
        k(f"v_bfe_u32 v12, v0, 2, 1\nv_lshlrev_b32 v12, 12, v12\nv_and_b32 v251, 3, v0\nv_lshl_add_u32 v12, v251, 7, v12\ns_lshl_b32 s{sA}, s{sG}, 13\ns_lshl_b32 s{sB}, s{sJ}, 9\ns_add_u32 s{sA}, s{sA}, s{sB}\ns_add_u32 s{sA}, s{sA}, {STG}\nv_add_u32 v12, s{sA}, v12")
        k("v_cmp_gt_u32 vcc, 6, v0\nv_cndmask_b32 v7, v12, v7, vcc")
        k(f"buffer_load_dword v251, v7, {srd(SWS)}, 0 offen", tag="touch")

    def tiles(self, X):
        H = lambda n: (v(self.KH + 4 * n, 4), [a_(self.VH + 8 * n + 4 * s_, 4) for s_ in range(2)], n)
        L = lambda n: (v(self.KL + 4 * n, 4), [v(self.VL + 8 * n + 4 * s_, 4) for s_ in range(2)], None)
        if X == 0:
            return L(0), H(0), [H(n) for n in range(7, 0, -1)]
        return L(1), H(1), [L(0)] + [H(n) for n in range(7, 1, -1)]

    def skip_unless(self, n):
        k = self.k
        lab = k.lab("skip")
        k(f"s_cmp_lt_u32 s{self.sGX}, {8 - n}\ns_cbranch_scc1 {lab}")
        k.opt = lab
        return lab

    def attn_generic(self, X):
        k = self.k
        SA, SB, SM, NG, OA, PP, MB = self.SA, self.SB, self.SM, self.NEGM, self.OA, self.PP, self.MB
        Q = v(self.QF + 4 * X, 4)
        diag, old, full = self.tiles(X)
        m = NG
        k(f"{M32} {v(SA, 16)}, {diag[0]}, {Q}, 0\n{M32} {v(SB, 16)}, {old[0]}, {Q}, 0")
        lab = k.lab("old")
        k(f"s_cmp_ge_u32 s{self.sGX}, {8 - old[2]}\ns_cbranch_scc1 {lab}")
        k.opt = lab
        for r in range(16):
            k(f"v_mov_b32 v{SB + r}, 0xff800000")
        k.opt = False
        k(f"{lab}:")
        for r in range(16):
            k(f"v_cndmask_b32 v{SM + r}, v{SB + r}, v{SA + r}, s[{SMASK + 2 * r}:{SMASK + 2 * r + 1}]")
        k(f"v_max_f32 v{m}, v{SM}, v{SM + 1}")
        for r in range(2, 16, 2):
            k(f"v_max3_f32 v{m}, v{m}, v{SM + r}, v{SM + r + 1}")
        for i, t in enumerate(full):
            S = SA if i & 1 else SB
            lab = self.skip_unless(t[2]) if t[2] is not None else None
            k(f"{M32} {v(S, 16)}, {t[0]}, {Q}, 0")
            for r in range(0, 16, 2):
                k(f"v_max3_f32 v{m}, v{m}, v{S + r}, v{S + r + 1}")
            if lab:
                k.opt = False
                k(f"{lab}:")
        k(f"v_mov_b32 v{m + 1}, v{m}\nv_permlane32_swap_b32 v{m}, v{m + 1}\nv_max_f32 v{m}, v{m}, v{m + 1}\nv_sub_f32 v{m}, 0, v{m}")
        for r in range(1, 16):
            k(f"v_mov_b32 v{NG + r}, v{m}")
        for r in range(16):
            k(f"v_add_f32 v{SM + r}, v{SM + r}, v{m}")
        for r in range(16):
            k(f"v_exp_f32 v{SM + r}, v{SM + r}")
        for p in range(8):
            k(f"v_cvt_pk_bf16_f32 v{PP + p}, v{SM + 2 * p}, v{SM + 2 * p + 1}")
        for p in range(8):
            k(f"v_and_b32 v{PP + 8 + p}, v{PP + p}, v{MB + p}")
        for p in range(8):
            k(f"v_xor_b32 v{PP + p}, v{PP + p}, v{PP + 8 + p}")
        O = v(OA, 16)
        k(f"{M32} {O}, {diag[1][0]}, {v(PP + 8, 4)}, 0\n{M32} {O}, {diag[1][1]}, {v(PP + 12, 4)}, {O}")
        k(f"{M32} {O}, {old[1][0]}, {v(PP, 4)}, {O}\n{M32} {O}, {old[1][1]}, {v(PP + 4, 4)}, {O}")
        for i, t in enumerate(full):
            S = SA if i & 1 else SB
            P = PP + 16 if i & 1 else PP + 8
            lab = self.skip_unless(t[2]) if t[2] is not None else None
            k(f"{M32} {v(S, 16)}, {t[0]}, {Q}, {v(NG, 16)}")
            for r in range(16):
                k(f"v_exp_f32 v{S + r}, v{S + r}")
            for p in range(8):
                k(f"v_cvt_pk_bf16_f32 v{P + p}, v{S + 2 * p}, v{S + 2 * p + 1}")
            k(f"{M32} {O}, {t[1][0]}, {v(P, 4)}, {O}\n{M32} {O}, {t[1][1]}, {v(P + 4, 4)}, {O}")
            if lab:
                k.opt = False
                k(f"{lab}:")

    def attn_out(self, X, sc):
        k = self.k
        OA = self.OA
        k(f"s_add_u32 s{sA}, s{self.sGX}, {X}\ns_lshl_b32 s{sA}, s{sA}, 5\ns_add_u32 s{sA}, s{sA}, s{sHEAD}\ns_lshl_b32 s{sB}, s{sA}, 10\ns_add_u32 s{sB}, s{sB}, {OB}")
        k(f"v_rcp_f32 v{OA + 8}, v{OA + 8}")
        for r in range(8):
            k(f"v_mul_f32 v{OA + r}, v{OA + r}, v{OA + 8}")
        for p in range(4):
            k(f"v_cvt_pk_bf16_f32 v{OA + 12 + p}, v{OA + 2 * p}, v{OA + 2 * p + 1}")
        k(f"buffer_store_dwordx4 {v(OA + 12, 4)}, v2, {srd(SWS)}, s{sB} offen{sc}", tag=f"ost{X}")

    def flag_store(self, base, X, tag, sc):
        k = self.k
        k.wait_vm(tag)
        k(f"s_add_u32 s{sA}, s{self.sGX}, {X}\ns_lshl_b32 s{sA}, s{sA}, 5\ns_add_u32 s{sA}, s{sA}, s{sHEAD}\ns_lshl_b32 s{sA}, s{sA}, 2\ns_add_u32 s{sA}, s{sA}, {base}")
        k(f"buffer_store_dword v15, v14, {srd(SWS)}, s{sA} offen{sc}")

    def flag_load8(self, base, X, dst):
        k = self.k
        k(f"s_add_u32 s{sA}, s{self.sGX}, {X}\ns_lshl_b32 s{sA}, s{sA}, 2\ns_add_u32 s{sA}, s{sA}, s{sW}\ns_lshl_b32 s{sA}, s{sA}, 5\ns_add_u32 s{sF}, s{sA}, {base}")
        ld = f"buffer_load_dword v{dst}, v13, {srd(SWS)}, s{sF} offen sc1"
        k(ld)
        return ld

    ACC, GA, CB, RT, YP = 32, 64, 72, 80, 104

    def reduce_write(self, red):
        k = self.k
        for p in (2, 3, 1):
            r = self.ACC + 16 * (p >> 1) + 8 * (p & 1)
            for q in range(2):
                k(f"ds_write_b128 v{108 + p}, {v(r + 4 * q, 4)} offset:{(p - 1) * 2048 + q * 1024 + red - self.redbase}")

    def reduce_read(self, red):
        k = self.k
        for p in (1, 2, 3):
            for q in range(2):
                k(f"ds_read_b128 {v(self.RT + 8 * (p - 1) + 4 * q, 4)}, v108 offset:{(p - 1) * 2048 + q * 1024 + red - self.redbase}")
        A, R = self.ACC, self.RT
        for q in range(4):
            k(f"v_pk_add_f32 {v(A + 2 * q, 2)}, {v(A + 2 * q, 2)}, {v(R + 2 * q, 2)}")
        for q in range(4):
            k(f"v_pk_add_f32 {v(R + 8 + 2 * q, 2)}, {v(R + 8 + 2 * q, 2)}, {v(R + 16 + 2 * q, 2)}")
        for q in range(4):
            k(f"v_pk_add_f32 {v(A + 2 * q, 2)}, {v(A + 2 * q, 2)}, {v(R + 8 + 2 * q, 2)}")

    def colvec(self, vec, dst, tmp):
        self.k(f"ds_read2_b64 {v(tmp, 4)}, v12 offset0:{vec * 128} offset1:{vec * 128 + 2}") if vec < 2 else None
        if vec >= 2:
            self.k(f"ds_read_b64 {v(tmp, 2)}, v12 offset:{L_MODB + vec * 1024}\nds_read_b64 {v(tmp + 2, 2)}, v12 offset:{L_MODB + vec * 1024 + 16}")
        self.unpack(dst, tmp, 4)

    def w2round(self, steps, slot0=0):
        atoms = []
        for i in range(0, len(steps), 2):
            atoms.append(self.rowdma(SW2, self.sW2B, steps[i] * 16384, self.sW12K, self.R_A + (slot0 + i) * 2048, "w2"))
        return atoms

    def w2reg(self, s_, p):
        return (a_, (s_ * 2 + p) * 4) if s_ < 8 else (v, 144 + ((s_ - 8) * 2 + p) * 4)

    def w2reads(self, steps, slot0=0):
        r = []
        for i, s_ in enumerate(steps):
            for p in range(2):
                f, base = self.w2reg(s_, p)
                for u in range(2):
                    r.append(Inst(f"ds_read_b64_tr_b16 {f(base + 2 * u, 2)}, v{self.W2A + p} offset:{(slot0 + i) * 2048 + u * 512}"))
        return r

    sW12K = 40
    W2A = 140

    def p3_half(self, X, sc, ofr):
        k = self.k
        A = self.ACC
        for s_ in range(8):
            for p in range(2):
                k(f"{M32} {v(A + 16 * p, 16)}, {a_((s_ * 2 + p) * 4, 4)}, {v(ofr + 4 * s_, 4)}, {'0' if s_ == 0 else v(A + 16 * p, 16)}")
        self.reduce_write(self.RED)
        x = self.X1 + 8 * X
        self.unpack(x, x + 4, 4)
        k.barrier()
        self.stamp(f"p3r{X}")
        self.reduce_read(self.RED)
        for r in range(8):
            k(f"v_fmac_f32 v{x + r}, v{self.GA + r}, v{A + r}")
        for r in range(8):
            k(f"v_mul_f32 v{A + r}, v{self.CB + r}, v{x + r}")
        k(f"s_add_u32 s{sA}, s{self.sGX}, {X}\ns_lshl_b32 s{sA}, s{sA}, 15\ns_lshl_b32 s{sB}, s{sHEAD}, 9\ns_add_u32 s{sA}, s{sA}, s{sB}\ns_add_u32 s{sA}, s{sA}, {YB}")
        for p in range(4):
            k(f"v_cvt_pk_bf16_f32 v{self.YP + p}, v{A + 2 * p}, v{A + 2 * p + 1}")
        k(f"buffer_store_dwordx4 {v(self.YP, 4)}, v3, {srd(SWS)}, s{sA} offen{sc}", tag=f"yst{X}")
        k(f"v_add_f32 v{A + 8}, v{x}, v{x + 1}\nv_mul_f32 v{A + 9}, v{x}, v{x}\nv_fmac_f32 v{A + 9}, v{x + 1}, v{x + 1}")
        for r in range(2, 8):
            k(f"v_add_f32 v{A + 8}, v{A + 8}, v{x + r}\nv_fmac_f32 v{A + 9}, v{x + r}, v{x + r}")
        k(f"v_permlane32_swap_b32 v{A + 8}, v{A + 9}\nv_add_f32 v{A + 8}, v{A + 8}, v{A + 9}")
        k(f"ds_write_b32 v7, v{A + 8} offset:{L_STP}")
        k.barrier()
        for q in range(4):
            k(f"ds_read_b64 {v(A + 2 * q, 2)}, v6 offset:{L_STP + 256 * q}")
        k(f"s_add_u32 s{sA}, s{self.sGX}, {X}\ns_lshl_b32 s{sA}, s{sA}, 12\ns_lshl_b32 s{sB}, s{sJ}, 9\ns_add_u32 s{sA}, s{sA}, s{sB}\ns_add_u32 s{sA}, s{sA}, {STG}\ns_cmp_eq_u32 s{sW}, 0\ns_cselect_b32 s{sB}, s{sA}, {hx(OOB)}")
        k(f"v_pk_add_f32 {v(A, 2)}, {v(A, 2)}, {v(A + 2, 2)}\nv_pk_add_f32 {v(A + 4, 2)}, {v(A + 4, 2)}, {v(A + 6, 2)}\nv_pk_add_f32 {v(A, 2)}, {v(A, 2)}, {v(A + 4, 2)}")
        k(f"v_mov_b32 v{A + 2}, v15\nv_mov_b32 v{A + 3}, v15")
        k(f"buffer_store_dwordx4 {v(A, 4)}, v5, {srd(SWS)}, s{sB} offen{sc}")
        self.flag_store(YFL, X, f"yst{X}", sc)
        self.stamp(f"p3e{X}")

    def o_loads(self, X, ofr):
        k = self.k
        k(f"s_add_u32 s{sA}, s{self.sGX}, {X}\ns_lshl_b32 s{sA}, s{sA}, 2\ns_add_u32 s{sA}, s{sA}, s{sW}\ns_lshl_b32 s{sA}, s{sA}, 13\ns_add_u32 s{sA}, s{sA}, {OB}\ns_add_u32 s{sB}, s{sA}, 4096")
        for s_ in range(8):
            k(f"buffer_load_dwordx4 {v(ofr + 4 * s_, 4)}, v2, {srd(SWS)}, s{sA if s_ < 4 else sB} offen offset:{(s_ & 3) * 1024} sc1")

    CS, BI, FA, YBUF, STV, FT, PK = 32, 44, 56, 80, 96, 104, 128

    def csbias(self):
        k = self.k
        k("v_and_b32 v4, 1, v0\nv_lshlrev_b32 v4, 10, v4\nv_sub_u32 v4, 4096, v4\nv_lshrrev_b32 v5, 5, v0\nv_lshl_add_u32 v4, v5, 5, v4\nv_bfe_u32 v5, v0, 4, 1\nv_lshl_add_u32 v4, v5, 3, v4")
        rd = lambda ks: f"ds_read2_b64 {v(self.YBUF + 4 * (ks & 3), 4)}, v4 offset0:{ks * 8} offset1:{ks * 8 + 2}"
        for ks in range(3):
            k(rd(ks))
        for ks in range(16):
            if ks + 3 < 16:
                k(rd(ks + 3))
            for f in range(3):
                k(f"{M16} {v(self.FA + 4 * f, 4)}, {a_(64 + 12 * ks + 4 * f, 4)}, {v(self.YBUF + 4 * (ks & 3), 4)}, {'0' if ks == 0 else v(self.FA + 4 * f, 4)}")
        k(f"v_mov_b32 v5, {hx(f2u(-LOG2E))}")
        for r in range(12):
            k(f"v_mov_b32_dpp v{self.CS + r}, v{self.FA + r} quad_perm:[0,0,2,2] row_mask:0xf bank_mask:0xf")
            k(f"v_mul_f32_dpp v{self.BI + r}, v{self.FA + r}, v5 quad_perm:[1,1,3,3] row_mask:0xf bank_mask:0xf")

    def y_fetch(self, X):
        k = self.k
        ld = self.flag_load8(YFL, X, 4)
        self.poll([ld], [4])
        self.stamp(f"yflag{X}")
        k(f"s_add_u32 s{sA}, s{self.sGX}, {X}\ns_lshl_b32 s{sA}, s{sA}, 15\ns_lshl_b32 s{sB}, s{sW}, 12\ns_add_u32 s{sA}, s{sA}, s{sB}\ns_add_u32 s{sA}, s{sA}, {YB}")
        for tt in range(2):
            k(f"s_add_u32 m0, s{sB}, {self.R_WO + X * 32768 + tt * 16384}")
            if tt:
                k(f"s_add_u32 s{sA}, s{sA}, 16384")
            for q in range(4):
                k(f"buffer_load_dwordx4 v2, {srd(SWS)}, s{sA} offen offset:{q * 1024} sc1 lds", tag=f"y{X}")
        lab = k.lab("nost")
        k(f"s_cmp_lg_u32 s{sW}, 0\ns_cbranch_scc1 {lab}")
        k.opt = lab
        T = self.FT
        k(f"v_and_b32 v4, 31, v0\nv_lshlrev_b32 v5, 3, v4\nv_lshlrev_b32 v4, 4, v4\nv_lshrrev_b32 v{T}, 5, v0\nv_lshl_add_u32 v4, v{T}, 11, v4")
        k(f"s_add_u32 s{sA}, s{self.sGX}, {X}\ns_lshl_b32 s{sA}, s{sA}, 12\ns_add_u32 s{sF}, s{sA}, {STG}")
        lds_ = [f"buffer_load_dwordx4 {v(T + 4 * q, 4)}, v4, {srd(SWS)}, s{sF} offen offset:{q * 512} sc1" for q in range(4)]
        k("\n".join(lds_))
        self.poll(lds_, [T + 2, T + 6, T + 10, T + 14])
        k(f"v_pk_add_f32 {v(T, 2)}, {v(T, 2)}, {v(T + 4, 2)}\nv_pk_add_f32 {v(T + 8, 2)}, {v(T + 8, 2)}, {v(T + 12, 2)}\nv_pk_add_f32 {v(T, 2)}, {v(T, 2)}, {v(T + 8, 2)}")
        k(f"v_permlane32_swap_b32 v{T}, v{T + 1}\nv_add_f32 v{T}, v{T}, v{T + 1}\nv_mov_b32 v{T + 1}, v{T}\nv_permlane32_swap_b32 v{T}, v{T + 1}")
        k(f"s_mov_b32 s{sA}, {hx(f2u(1.0 / 512))}\nv_mul_f32 v{T}, s{sA}, v{T}\nv_mul_f32 v{T + 2}, v{T}, v{T}\nv_fma_f32 v{T + 1}, v{T + 1}, s{sA}, -v{T + 2}")
        k(f"v_max_f32 v{T + 1}, 0, v{T + 1}\nv_add_f32 v{T + 1}, {hx(f2u(1e-5))}, v{T + 1}\nv_rsq_f32 v{T + 1}, v{T + 1}\nv_mul_f32 v{T + 1}, {hx(f2u(-LOG2E))}, v{T + 1}")
        k(f"ds_write_b64 v5, {v(T, 2)} offset:{L_ST + X * 256}")
        k.drain_lgkm()
        k.opt = False
        k(f"{lab}:")

    def p4_mfma(self, X, tt):
        k = self.k
        acc = self.FA + 12 * tt
        rd = lambda ks: f"ds_read_b128 {v(self.YBUF + 4 * (ks & 3), 4)}, v6 offset:{X * 32768 + tt * 16384 + ks * 1024}"
        for ks in range(3):
            k(rd(ks))
        for ks in range(16):
            if ks + 3 < 16:
                k(rd(ks + 3))
            for f in range(3):
                k(f"{M16} {v(acc + 4 * f, 4)}, {a_(64 + 12 * ks + 4 * f, 4)}, {v(self.YBUF + 4 * (ks & 3), 4)}, {'0' if ks == 0 else v(acc + 4 * f, 4)}")

    def p4_epi(self, X, tt):
        k = self.k
        acc, T = self.FA + 12 * tt, self.FT
        mu, rs = self.STV + 4 * X + 2 * tt, self.STV + 4 * X + 2 * tt + 1
        for r in range(12):
            k(f"v_fma_f32 v{acc + r}, -v{mu}, v{self.CS + r}, v{acc + r}")
        for r in range(12):
            k(f"v_fma_f32 v{acc + r}, v{acc + r}, v{rs}, v{self.BI + r}")
        for r in range(12):
            k(f"v_exp_f32 v{T + r}, v{acc + r}")
        for r in range(12):
            k(f"v_add_f32 v{T + r}, 1.0, v{T + r}")
        for r in range(12):
            k(f"v_rcp_f32 v{T + r}, v{T + r}")
        for r in range(12):
            k(f"v_mul_f32 v{T + r}, v{T + r}, v{acc + r}")
        for f in range(3):
            for p in range(2):
                k(f"v_cvt_pk_bf16_f32 v{self.PK + 4 * f + 2 * tt + p}, v{T + 4 * f + 2 * p}, v{T + 4 * f + 2 * p + 1}")

    def p4_store(self, X, sc):
        k = self.k
        k(f"s_add_u32 s{sA}, s{self.sGX}, {X}\ns_mul_i32 s{sA}, s{sA}, 88\ns_mul_i32 s{sB}, s{sW}, 3\ns_add_u32 s{sA}, s{sA}, s{sB}\ns_add_u32 s{sA}, s{sA}, s{self.sST16}\ns_lshl_b32 s{sA}, s{sA}, 10\ns_add_u32 s{sA}, s{sA}, {HB}")
        k(f"s_cmp_ge_u32 s{sJ}, 3\ns_cselect_b32 s{sB}, s{sW}, 0\ns_cmp_eq_u32 s{sB}, 3\ns_cselect_b32 s{sB}, {hx(OOB)}, s{sA}")
        for f in range(3):
            for p in range(2):
                k(f"v_permlane16_swap_b32 v{self.PK + 4 * f + p}, v{self.PK + 4 * f + 2 + p}")
        for f in range(3):
            k(f"buffer_store_dwordx4 {v(self.PK + 4 * f, 4)}, v2, {srd(SWS)}, s{sA if f == 0 else sB} offen offset:{f * 1024}{sc}", tag=f"hst{X}")

    def p5_fetch(self, X):
        k = self.k
        k(f"s_add_u32 s{sA}, s{self.sGX}, {X}\ns_lshl_b32 s{sA}, s{sA}, 7\ns_add_u32 s{sF}, s{sA}, {HFL}")
        ld = f"buffer_load_dword v4, v13, {srd(SWS)}, s{sF} offen sc1"
        k(ld)
        self.poll([ld], [4])
        self.stamp(f"hflag{X}")
        k(f"s_add_u32 s{sA}, s{self.sGX}, {X}\ns_mul_i32 s{sA}, s{sA}, 88\ns_mul_i32 s{sB}, s{sW}, 22\ns_add_u32 s{sA}, s{sA}, s{sB}\ns_lshl_b32 s{sA}, s{sA}, 10\ns_add_u32 s{sA}, s{sA}, {HB}")
        for s_ in range(22):
            if s_ == 20:
                k(f"s_cmp_eq_u32 s{sW}, 3\ns_cselect_b32 s{sA}, {hx(OOB)}, s{sA}")
            k(f"buffer_load_dwordx4 {a_(64 + 88 * X + 4 * s_, 4)}, v2, {srd(SWS)}, s{sA} offen offset:{(s_ & 3) * 1024} sc1")
            if s_ & 3 == 3:
                k(f"s_add_u32 s{sA}, s{sA}, 4096")

    def p5_half(self, X):
        k = self.k
        A = self.ACC
        for s_ in range(22):
            for p in range(2):
                f, base = self.w2reg(s_, p)
                k(f"{M32} {v(A + 16 * p, 16)}, {f(base, 4)}, {a_(64 + 88 * X + 4 * s_, 4)}, {'0' if s_ == 0 else v(A + 16 * p, 16)}")
        red = self.redbase + X * 24576
        self.reduce_write(red)
        k.barrier()
        self.stamp(f"p5r{X}")
        self.reduce_read(red)
        x = self.X1 + 8 * X
        for r in range(8):
            k(f"v_fmac_f32 v{x + r}, v{self.GA + r}, v{A + r}")
        k(f"s_add_u32 s{sA}, s{self.sGX}, {X}\ns_lshl_b32 s{sA}, s{sA}, 15\ns_lshl_b32 s{sB}, s{sHEAD}, 5\ns_add_u32 s{sA}, s{sA}, s{sB}")
        for p in range(4):
            k(f"v_cvt_pk_bf16_f32 v{self.YP + p}, v{x + 2 * p}, v{x + 2 * p + 1}")
        k(f"v_permlane32_swap_b32 v{self.YP}, v{self.YP + 2}\nv_permlane32_swap_b32 v{self.YP + 1}, v{self.YP + 3}")
        k(f"buffer_store_dwordx4 {v(self.YP, 4)}, v3, {srd(SOUT)}, s{sA} offen")

    def epoch(self):
        k = self.k
        lab = k.lab("noep")
        k(f"s_lshl_b32 s{sA}, s2, 2\ns_add_u32 s{sA}, s{sA}, s{sW}\ns_cmp_lg_u32 s{sA}, 3\ns_cbranch_scc1 {lab}")
        k.opt = lab
        k(f"s_mov_b32 s{sF}, {ARR}")
        lds_ = [f"buffer_load_dwordx4 {v(self.SA + 4 * q, 4)}, v2, {srd(SWS)}, s{sF} offen offset:{q * 1024} sc1" for q in range(2)]
        k("\n".join(lds_))
        self.poll(lds_, [self.SA + 1, self.SA + 3, self.SA + 5, self.SA + 7])
        k(f"buffer_store_dword v15, v14, {srd(SWS)}, 0 offen sc1")
        k.opt = False
        k(f"{lab}:")

    def post(self, slow):
        k = self.k
        sc = " sc1" if slow else ""
        emit = lambda l: [k.add(i) for i in l]
        self.epoch()
        self.stamp("attn")
        fg = self.capture(lambda: self.attn_generic(0))
        bg = [self.w1dma(ks, self.R_A + ks * 12288, "w1a") for ks in range(6)]
        fg, rest = merge(fg, bg, 300)
        emit(fg)
        for b in rest:
            emit(b)
        self.attn_out(0, sc)
        k.wait_vm("w1a", "xr")
        k.barrier()
        self.stamp("attnA")
        for ks in range(6):
            emit(self.w1read(ks, (ks % 5) * 12288 if ks < 5 else 61440))
        k(f"v_and_b32 v7, 31, v0\nv_bfe_u32 v12, v0, 1, 3\ns_lshl_b32 s{sA}, s{sW}, 1\nv_xor_b32 v12, s{sA}, v12\nv_lshlrev_b32 v7, 7, v7\nv_lshl_add_u32 v7, v12, 4, v7")
        k(f"v_lshrrev_b32 v12, 5, v0\nv_lshl_add_u32 v7, v12, 3, v7\nv_add_u32 v7, {self.R_X}, v7\nv_xor_b32 v12, 16, v7")
        for X in range(2):
            k(f"ds_read_b64 {v(self.X1 + 8 * X + 4, 2)}, v7 offset:{X * 4096}\nds_read_b64 {v(self.X1 + 8 * X + 6, 2)}, v12 offset:{X * 4096}")
        self.flag_store(OFL, 0, "ost0", sc)
        fg = self.capture(lambda: self.attn_generic(1))
        bg = [self.w1dma(ks, self.R_WO + (ks - 6) * 12288, "w1b") for ks in range(6, 11)]
        fg, rest = merge(fg, bg, 300)
        emit(fg)
        for b in rest:
            emit(b)
        ld = self.flag_load8(OFL, 0, 7)
        self.attn_out(1, sc)
        self.poll([ld], [7])
        self.o_loads(0, self.OFA)
        k.wait_vm("w1b")
        k.barrier()
        self.stamp("attnB")
        for f in range(3):
            k(f"v_add_u32 v{240 + f}, {self.R_WO - self.R_A}, v{240 + f}")
        for ks in range(6, 11):
            emit(self.w1read(ks, (ks - 6) * 12288))
        self.flag_store(OFL, 1, "ost1", sc)
        for ks in range(11, 16):
            emit(self.w1dma(ks, self.R_A + (ks - 11) * 12288, "w1c"))
        self.redbase = self.RED
        k(f"s_mul_i32 s{sA}, s{sW}, 6144\ns_add_u32 s{sA}, s{sA}, {self.RED}\nv_add_u32 v108, s{sA}, v2")
        k(f"v_lshrrev_b32 v4, 5, v0\ns_lshl_b32 s{sA}, s{sHEAD}, 5\nv_lshl_add_u32 v12, v4, 3, s{sA}")
        self.colvec(2, self.GA, self.RT)
        self.colvec(4, self.CB, self.RT + 4)
        k("v_bfe_u32 v3, v0, 4, 1\nv_lshlrev_b32 v3, 14, v3\nv_and_b32 v5, 15, v0\nv_lshl_add_u32 v3, v5, 4, v3\nv_lshl_add_u32 v3, v4, 8, v3")
        k(f"v_and_b32 v5, 31, v0\nv_lshlrev_b32 v6, 3, v5\nv_lshl_add_u32 v7, v4, 2, v6\ns_lshl_b32 s{sA}, s{sW}, 8\nv_add_u32 v7, s{sA}, v7\nv_lshlrev_b32 v5, 4, v5\nv_lshl_add_u32 v5, v4, 24, v5")
        self.p3_half_w(0, sc, self.OFA)
        ld = self.flag_load8(OFL, 1, 4)
        self.poll([ld], [4])
        self.o_loads(1, 112)
        k.wait_vm("w1c")
        self.p3_half_w(1, sc, 112)
        for f in range(3):
            k(f"v_add_u32 v{240 + f}, {self.R_A - self.R_WO}, v{240 + f}")
        for ks in range(11, 16):
            emit(self.w1read(ks, (ks - 11) * 12288))
        k(f"s_mul_i32 s{self.sW12K}, s{sW}, 12288\ns_add_u32 s{sA}, s{self.sW12K}, {self.R_A}\nv_add_u32 v{self.W2A}, s{sA}, v246\nv_xor_b32 v{self.W2A + 1}, 64, v{self.W2A}")
        self.y_fetch(0)
        k.wait_vm("y0")
        k.barrier()
        self.csbias()
        k(f"v_add_u32 v6, {self.R_WO}, v2\nv_and_b32 v7, 15, v0\nv_lshlrev_b32 v7, 3, v7")
        for tt in range(2):
            k(f"ds_read_b64 {v(self.STV + 2 * tt, 2)}, v7 offset:{L_ST + tt * 128}")
        rounds = [list(range(16, 22)), list(range(10, 16)), [8, 9, 0, 1, 2, 3], [4, 5, 6, 7]]
        def w2_round(n):
            st = rounds[n]
            k.drain_lgkm()
            for at in self.w2round(st):
                emit(at)
        def w2_take(n):
            k.wait_vm("w2")
            emit(self.w2reads(rounds[n]))
        self.stamp("p4s")
        w2_round(0)
        self.p4_mfma(0, 0)
        w2_take(0)
        self.p4_epi(0, 0)
        w2_round(1)
        self.p4_mfma(0, 1)
        w2_take(1)
        self.p4_epi(0, 1)
        self.p4_store(0, sc)
        self.y_fetch(1)
        self.flag_store(HFL, 0, "hst0", sc)
        k.wait_vm("y1")
        k.barrier()
        for tt in range(2):
            k(f"ds_read_b64 {v(self.STV + 4 + 2 * tt, 2)}, v7 offset:{L_ST + 256 + tt * 128}")
        w2_round(2)
        self.p4_mfma(1, 0)
        w2_take(2)
        self.p4_epi(1, 0)
        w2_round(3)
        self.p4_mfma(1, 1)
        w2_take(3)
        self.p4_epi(1, 1)
        self.p4_store(1, sc)
        self.stamp("p4e")
        k("v_and_b32 v13, 31, v0\nv_lshlrev_b32 v13, 2, v13")
        self.p5_fetch(0)
        self.flag_store(HFL, 1, "hst1", sc)
        self.colvec(5, self.GA, self.RT)
        k(f"s_mov_b32 s{sA}, {hx(f2u(-0.6931471805599453))}")
        for r in range(8):
            k(f"v_mul_f32 v{self.GA + r}, s{sA}, v{self.GA + r}")
        k("v_and_b32 v3, 31, v0\nv_lshlrev_b32 v3, 10, v3\nv_lshrrev_b32 v4, 5, v0\nv_lshl_add_u32 v3, v4, 4, v3")
        k.barrier()
        self.redbase = self.R_WO
        k(f"s_mul_i32 s{sA}, s{sW}, 6144\ns_add_u32 s{sA}, s{sA}, {self.R_WO}\nv_add_u32 v108, s{sA}, v2")
        self.p5_fetch(1)
        self.p5_half_w(0)
        self.p5_half_w(1)
        self.stamp("done")

    def _redaddr(self):
        k = self.k
        for p in (1, 2, 3):
            k(f"s_xor_b32 s{sA}, s{sW}, {p}\ns_mul_i32 s{sA}, s{sA}, 6144\ns_add_u32 s{sA}, s{sA}, {self.redbase}\nv_add_u32 v{108 + p}, s{sA}, v2")

    def p3_half_w(self, X, sc, ofr):
        if X == 0:
            self._redaddr()
        self.p3_half(X, sc, ofr)

    def p5_half_w(self, X):
        if X == 0:
            self._redaddr()
        self.p5_half(X)

    def finish(self):
        k = self.k
        if self.used_stamps and self.dbg:
            k.drain_lgkm()
            k(f"s_mov_b32 s{SX}, s{SC_DBG}\ns_mov_b32 s{SX + 1}, s{SC_DBG + 1}\ns_mov_b32 s{SX + 2}, 256\nv_cmp_eq_u32 vcc, 0, v0\nv_mov_b32 v5, 0x1000\nv_cndmask_b32 v5, v5, 0, vcc")
            k(f"s_not_b32 s{sA}, s{self.slots[0]}\nv_mov_b32 v6, s{sA}\nbuffer_atomic_umax v6, v5, {srd(SX)}, 0 offen")
            for n in range(len(self.used_stamps)):
                k(f"v_mov_b32 v{16 + n}, s{self.slots[n]}\nbuffer_atomic_umax v{16 + n}, v5, {srd(SX)}, 0 offen offset:{4 + 4 * n}")
        elif self.used_stamps:
            k.drain_lgkm()
            k(f"s_lshl_b32 s{sA}, s2, 2\ns_add_u32 s{sA}, s{sA}, s{sW}\ns_lshl_b32 s{sA}, s{sA}, 8\ns_add_u32 s{sA}, s{sA}, {DBG}")
            k("v_mov_b32 v5, 0")
            for n in range(len(self.used_stamps)):
                k(f"v_mov_b32 v6, s{self.slots[n]}\nbuffer_store_dword v6, v5, {srd(SWS)}, s{sA} offen offset:{4 * n}")
            k(f"s_memrealtime s[86:87]\ns_waitcnt lgkmcnt(0)\nv_mov_b32 v6, s86\nbuffer_store_dword v6, v5, {srd(SWS)}, s{sA} offen offset:64")
        k("s_endpgm")

    def dump_regs(self, first, n, slot):
        k = self.k
        k(f"s_lshl_b32 s{sA}, s2, 2\ns_add_u32 s{sA}, s{sA}, s{sW}\ns_lshl_b32 s{sA}, s{sA}, 14\ns_add_u32 s{sA}, s{sA}, {slot * 256}")
        k(f"s_mov_b32 s[{SWS + 2}:{SWS + 2}], 0x8000000".replace(f"s[{SWS + 2}:{SWS + 2}]", f"s{SWS + 2}"))
        k(f"s_add_u32 s{sA}, s{sA}, 0x2000000\nv_lshlrev_b32 v5, 2, v0")
        for i in range(n):
            k(f"buffer_store_dword v{first + i}, v5, {srd(SWS)}, s{sA} offen offset:{i * 256}")
        k(f"s_waitcnt vmcnt(0)\ns_mov_b32 s{SWS + 2}, {hx(WSZ)}")

    def build(self):
        k = self.k
        self.p0()
        self.p1_ln()
        self.p1_gemm()
        self.p2_setup()
        k.alt_begin()
        self.post(False)
        self.finish()
        k("L_fastend:")
        k.alt_end()
        k("L_slowmode:")
        st, self.stamps = self.stamps, (self.stamps if self.force_slow else [])
        if self.force_slow:
            self.used_stamps = [x for x in self.used_stamps if x in self.pre_stamps]
        self.post(True)
        self.finish()
        k("L_end:\ns_endpgm")
        k.finalize()
        return self.wrap(k.text())

    def wrap(self, body):
        head = open("adaLN_cond__sliding_block__dense_activation_silu__prompt.s.ref").read().split("; Override launch")[0]
        return f"""{head}; @launch grid=(256,1,1) block=(256,1,1) lds={LDS_BYTES}
.amdgcn_target "amdgcn-amd-amdhsa--gfx950"
.text
.globl {NAME}
.p2align 8
.type {NAME},@function
{NAME}:
{body}
.section .rodata,"a"
.p2align 6
.amdhsa_kernel {NAME}
  .amdhsa_next_free_vgpr 512
  .amdhsa_next_free_sgpr 102
  .amdhsa_accum_offset 256
  .amdhsa_group_segment_fixed_size 0
  .amdhsa_kernarg_size 88
  .amdhsa_user_sgpr_count 2
  .amdhsa_user_sgpr_kernarg_segment_ptr 1
  .amdhsa_system_sgpr_workgroup_id_x 1
  .amdhsa_float_denorm_mode_32 3
.end_amdhsa_kernel
"""


if __name__ == "__main__":
    import argparse
    ap = argparse.ArgumentParser()
    ap.add_argument("-o", default="out.s")
    ap.add_argument("--upto", type=int, default=99)
    ap.add_argument("--stamps", default="")
    ap.add_argument("--slow", action="store_true")
    ap.add_argument("--dbg", action="store_true")
    a = ap.parse_args()
    g = Gen(a.upto, [s for s in a.stamps.split(",") if s], a.slow, a.dbg)
    txt = g.build()
    open(a.o, "w").write(txt)
    print("instructions:", sum(1 for i in g.k.final if i.states), "hazard nops:", g.k.nops, file=sys.stderr)
    for m, t in g.k.timeline():
        print(f"  {m:10s} {t}", file=sys.stderr)
```

```python
import sys
from asmgen import Prog, Inst, Pseudo, merge

NAME = "adaLN_cond__sliding_block__dense_activation_silu__prompt_kernel"

EPOCH, ARR, MODG = 0x0, 0x1000, 0x2000
OFL, YFL, HFL = 0x8000, 0xA000, 0xC000
STG = 0x10000
KFL, VFL = 0x60000, 0x80000
DBG = 0xA0000
KB, VB, OB, YB, HB = 0x100000, 0x300000, 0x500000, 0x700000, 0x900000
HSTR = 88 * 1024
WSZ = 0x1000000
OOB = WSZ
TAGC = 0x9E3779B9

L_MODB = 0
L_SIL = 6144
L_MRED = 8192
L_STP = 8192
L_ST = 9216
POOL = 10240
LDS_BYTES = 163840
L_H = POOL
L_S1 = POOL + 65536
L_S2 = POOL + 131072

SX, SWQ, SWO, SW1, SW2, SWS, SOUT, SMOD, SC = 4, 8, 12, 16, 20, 24, 28, 32, 36
SMASK = 40
sT, sW, sJ, sG, sHEAD, sSTRIP = 72, 73, 74, 75, 76, 77
sA, sB, sC_, sD, sE, sF = 78, 79, 80, 81, 82, 83
sCNT = 84
SC_DBG = 100
sHI = 85
srd = lambda n: f"s[{n}:{n + 3}]"
v = lambda a, n=1: f"v{a}" if n == 1 else f"v[{a}:{a + n - 1}]"
a_ = lambda a, n=1: f"a{a}" if n == 1 else f"a[{a}:{a + n - 1}]"
LOG2E = 1.4426950408889634


def f2u(x):
    import struct
    return struct.unpack("<I", struct.pack("<f", x))[0]


def hx(x):
    return hex(x & 0xFFFFFFFF)


M16 = "v_mfma_f32_16x16x32_bf16"
M32 = "v_mfma_f32_32x32x16_bf16"


class Gen:
    def __init__(self, upto=99, stamps=(), force_slow=False, dbg=False):
        self.dbg = dbg
        self.k = Prog()
        self.upto = upto
        self.stamps = list(stamps)
        self.force_slow = force_slow
        self.slots = [86, 88, 90, 92, 94, 96, 98, 100]
        self.used_stamps = []

    def stamp(self, name):
        self.k.mark(name)
        if name in self.stamps and name not in self.used_stamps:
            s = self.slots[len(self.used_stamps)]
            self.used_stamps.append(name)
            self.k(f"{'s_memrealtime' if self.dbg else 's_memtime'} s[{s}:{s + 1}]")

    def capture(self, fn):
        k = self.k
        save = k.ins
        k.ins = []
        fn()
        r = k.ins
        k.ins = save
        return r

    def poll(self, loads, checks):
        k = self.k
        slow, ret = k.lab("poll"), k.lab("ret")
        self._cmp(checks, k)
        k(f"s_cbranch_vccnz {slow}")
        k(f"{ret}:")
        t = [f"{slow}:", f"s_mov_b32 s{sCNT}, 0", f"{slow}_l:", "s_sleep 1"] + loads + ["s_waitcnt vmcnt(0)"]
        p = Prog()
        self._cmp(checks, p)
        t += [i.text for i in p.finalize()]
        t += ["s_nop 1", f"s_cbranch_vccz {ret}", f"s_add_u32 s{sCNT}, s{sCNT}, 1", f"s_cmp_lt_u32 s{sCNT}, 0x40000",
              f"s_cbranch_scc1 {slow}_l", "s_endpgm"]
        k.tail += t

    def _cmp(self, checks, k):
        k(f"v_cmp_ne_u32 vcc, s{sT}, v{checks[0]}")
        for c in checks[1:]:
            k(f"v_cmp_ne_u32 s[0:1], s{sT}, v{c}")
            k("s_or_b64 vcc, vcc, s[0:1]")

    def unpack(self, dst, src, n):
        for q in range(n):
            self.k(f"v_lshlrev_b32 v{dst + 2 * q}, 16, v{src + q}")
            self.k(f"v_and_b32 v{dst + 2 * q + 1}, s{sHI}, v{src + q}")

    def p0(self):
        k = self.k
        k("s_cmp_ge_u32 s2, 256\ns_cbranch_scc1 L_end")
        k(f"s_load_dwordx2 s[{SC}:{SC + 1}], s[0:1], 48")
        k(f"s_load_dwordx2 s[{SMOD}:{SMOD + 1}], s[0:1], 56")
        k(f"s_load_dwordx2 s[{SX}:{SX + 1}], s[0:1], 0")
        k(f"s_load_dwordx2 s[{SWQ}:{SWQ + 1}], s[0:1], 8")
        k(f"s_load_dwordx2 s[{SWS}:{SWS + 1}], s[0:1], 80")
        self.stamp("start")
        if self.dbg:
            k(f"s_load_dwordx2 s[{SC_DBG}:{SC_DBG + 1}], s[0:1], 72")
        k("v_lshrrev_b32 v1, 6, v0\nv_and_b32 v0, 63, v0")
        k(f"s_and_b32 s{sA}, s2, 7\ns_lshl_b32 s{sA}, s{sA}, 2\ns_lshr_b32 s{sG}, s2, 6\ns_add_u32 s{sG}, s{sG}, s{sA}")
        k(f"v_readfirstlane_b32 s{sW}, v1")
        k(f"s_bfe_u32 s{sJ}, s2, 0x30003")
        for r, n in ((SC, 1024), (SMOD, 3145728), (SX, 2097152), (SWQ, 1572864), (SWS, WSZ)):
            k(f"s_mov_b32 s{r + 2}, {hx(n)}\ns_mov_b32 s{r + 3}, 0x20000")
        k(f"s_mov_b32 s{sHI}, 0xffff0000")
        k(f"s_lshl_b32 s{sHEAD}, s{sJ}, 2\ns_add_u32 s{sHEAD}, s{sHEAD}, s{sW}")
        k(f"s_and_b32 s{sA}, s{sG}, 1\ns_lshl_b32 s{sA}, s{sA}, 4\ns_lshr_b32 s{sB}, s{sG}, 1\ns_add_u32 s{sA}, s{sA}, s{sB}")
        k(f"s_add_u32 s{sB}, s{sG}, 32\ns_cmp_eq_u32 s{sJ}, 4\ns_cselect_b32 s{sSTRIP}, s{sB}, 99")
        k(f"s_cmp_eq_u32 s{sJ}, 3\ns_cselect_b32 s{sSTRIP}, s{sA}, s{sSTRIP}")
        k("v_lshlrev_b32 v2, 4, v0\nv_lshrrev_b32 v3, 3, v0\nv_and_b32 v4, 7, v0")
        k("s_waitcnt lgkmcnt(0)")
        k(f"s_load_dword s{sT}, s[{SWS}:{SWS + 1}], {EPOCH}")
        k(f"s_load_dwordx2 s[{SWO}:{SWO + 1}], s[0:1], 16")
        k(f"s_load_dwordx2 s[{SW1}:{SW1 + 1}], s[0:1], 32")
        k(f"s_load_dwordx2 s[{SW2}:{SW2 + 1}], s[0:1], 40")
        k(f"s_load_dwordx2 s[{SOUT}:{SOUT + 1}], s[0:1], 64")
        k(f"s_cmp_ge_u32 s{sSTRIP}, 48\ns_cbranch_scc1 L_np0")
        k.opt = "prod"
        k(f"v_lshlrev_b32 v5, 2, v0\ns_lshl_b32 s{sA}, s{sW}, 8")
        k(f"buffer_load_dword v248, v5, {srd(SC)}, s{sA} offen")
        k(f"v_mul_u32_u24 v5, {16 * 6144}, v3\nv_lshl_add_u32 v5, v4, 4, v5")
        k(f"s_mul_i32 s{sA}, s{sW}, {128 * 6144}\ns_lshl_b32 s{sB}, s{sSTRIP}, 7\ns_add_u32 s{sA}, s{sA}, s{sB}")
        for i in range(16):
            k(f"buffer_load_dwordx4 {v(176 + 4 * i, 4)}, v5, {srd(SMOD)}, s{sA} offen")
            if i < 15:
                k(f"s_addk_i32 s{sA}, 6144")
        k.opt = False
        k("L_np0:")
        k(f"v_lshlrev_b32 v5, 7, v0\ns_lshl_b32 s{sA}, s{sG}, 16\ns_lshl_b32 s{sB}, s{sJ}, 13\ns_add_u32 s{sA}, s{sA}, s{sB}")
        k(f"s_cmp_eq_u32 s{sW}, 0\ns_cselect_b32 s{sA}, s{sA}, 0x1000000")
        k(f"buffer_load_dword v249, v5, {srd(SX)}, s{sA} offen", tag="touch")
        k(f"v_and_b32 v5, 15, v0\nv_mul_u32_u24 v5, 3072, v5\nv_lshrrev_b32 v6, 4, v0\nv_lshl_add_u32 v5, v6, 10, v5")
        k(f"v_cmp_gt_u32 vcc, 48, v0\nv_mov_b32 v6, 0x1000000\nv_cndmask_b32 v5, v6, v5, vcc")
        k(f"s_mul_i32 s{sA}, s{sG}, {16 * 3072}\ns_lshl_b32 s{sB}, s{sJ}, 7\ns_add_u32 s{sA}, s{sA}, s{sB}")
        k(f"s_cmp_eq_u32 s{sW}, 1\ns_cselect_b32 s{sA}, s{sA}, 0x1000000")
        k(f"buffer_load_dword v250, v5, {srd(SWQ)}, s{sA} offen", tag="touch")
        k(f"s_cmp_lg_u32 s{sW}, 2\ns_cbranch_scc1 L_nc")
        k.opt = "code"
        k(f"s_getpc_b64 s[{sE}:{sE + 1}]\nL_pc:")
        k(f"s_lshr_b32 s{sA}, s2, 3\ns_lshl_b32 s{sA}, s{sA}, 11\nv_and_b32 v5, 15, v0\nv_lshl_add_u32 v5, v5, 7, s{sA}")
        k("v_min_u32 v5, L_fastend-L_pc, v5")
        k(f"global_load_dword v251, v5, s[{sE}:{sE + 1}]", tag="touch")
        k.opt = False
        k("L_nc:")
        k(f"s_lshl_b32 s{sA}, s{sG}, 16\ns_lshl_b32 s{sB}, s{sW}, 14\ns_add_u32 s{sA}, s{sA}, s{sB}")
        for r in range(16):
            k(f"buffer_load_dwordx4 {v(16 + 8 * r + 4, 4)}, v2, {srd(SX)}, s{sA} offen offset:{(r & 3) * 1024}")
            if r & 3 == 3 and r < 15:
                k(f"s_addk_i32 s{sA}, 4096")
        k("v_bfe_u32 v5, v0, 4, 1\nv_lshrrev_b32 v6, 1, v4\nv_xor_b32 v5, v5, v6\nv_lshlrev_b32 v5, 5, v5")
        k("v_and_b32 v6, 1, v0\nv_lshl_add_u32 v5, v6, 4, v5\nv_mul_u32_u24 v6, 3072, v3\nv_add_u32 v8, v5, v6")
        k(f"v_xor_b32 v9, 64, v5\nv_add_u32 v9, v9, v6\nv_add_u32 v9, {24576 - 1024}, v9")
        k(f"v_add_u32 v10, {2 * (24576 - 1024)}, v8\nv_add_u32 v11, {2 * (24576 - 1024)}, v9")
        k(f"s_mul_i32 s{sD}, s{sW}, {32 * 3072}\ns_lshl_b32 s{sB}, s{sJ}, 7\ns_add_u32 s{sD}, s{sD}, s{sB}\ns_lshl_b32 s{sC_}, s{sW}, 12")
        for i in range(4):
            for b in self.wq_block(1, i, L_H + i * 16384, "wk"):
                k.add(b)
        for i in range(4):
            for b in self.wq_block(2, i, L_S1 + i * 16384, "wv"):
                k.add(b)
        for b in self.wq_block(0, 3, L_S2, "wq1"):
            k.add(b)
        for r, n in ((SWO, 524288), (SW1, 1409024), (SW2, 1409024), (SOUT, 2097152)):
            k(f"s_mov_b32 s{r + 2}, {hx(n)}\ns_mov_b32 s{r + 3}, 0x20000")
        k.drain_lgkm()
        k(f"s_add_u32 s{sT}, s{sT}, {hx(TAGC)}")
        self.stamp("issued")
        k(f"s_cmp_ge_u32 s{sSTRIP}, 48\ns_cbranch_scc1 L_np1")
        k.opt = "prod"
        self.unpack(252, 248, 1)
        for r in (252, 253):
            k(f"v_mul_f32 v{r + 2}, {hx(f2u(-LOG2E))}, v{r}")
        for r in (254, 255):
            k(f"v_exp_f32 v{r}, v{r}")
        for r in (254, 255):
            k(f"v_add_f32 v{r}, 1.0, v{r}")
        for r in (254, 255):
            k(f"v_rcp_f32 v{r}, v{r}")
        for r in (252, 253):
            k(f"v_mul_f32 v{r}, v{r}, v{r + 2}")
        k("v_cvt_pk_bf16_f32 v248, v252, v253")
        self.unpack(252, 248, 1)
        k(f"s_lshl_b32 s{sA}, s{sW}, 9\nv_lshl_add_u32 v5, v0, 3, s{sA}\nv_lshl_add_u32 v6, v3, 6, s{sA}")
        k(f"ds_write_b64 v5, v[252:253] offset:{L_SIL}")
        k.drain_lgkm()
        for q in range(4):
            k(f"ds_read_b128 {v(144 + 4 * q, 4)}, v6 offset:{L_SIL + 16 * q}")
        for i in range(16):
            t = 160 if i & 1 else 168
            self.unpack(t, 176 + 4 * i, 4)
            sp = v(144 + (i & ~1), 2)
            sel = i & 1
            for q in range(4):
                if i == 0:
                    k(f"v_pk_mul_f32 {v(240 + 2 * q, 2)}, {v(t + 2 * q, 2)}, {sp} op_sel:[0,{sel}] op_sel_hi:[1,{sel}]")
                else:
                    k(f"v_pk_fma_f32 {v(240 + 2 * q, 2)}, {v(t + 2 * q, 2)}, {sp}, {v(240 + 2 * q, 2)} op_sel:[0,{sel},0] op_sel_hi:[1,{sel},1]")
        for q in range(4):
            k(f"v_permlane32_swap_b32 v{240 + q}, v{244 + q}")
        for q in range(4):
            k(f"v_add_f32 v{240 + q}, v{240 + q}, v{244 + q}")
        for q in range(2):
            k(f"v_permlane16_swap_b32 v{240 + q}, v{242 + q}")
        for q in range(2):
            k(f"v_add_f32 v{240 + q}, v{240 + q}, v{242 + q}")
        for q in range(2):
            k(f"v_add_f32_dpp v{240 + q}, v{240 + q}, v{240 + q} row_ror:8 row_mask:0xf bank_mask:0xf")
        k(f"ds_write_b64 v5, v[240:241] offset:{L_MRED}")
        k.barrier()
        k(f"s_cmp_lg_u32 s{sW}, 0\ns_cbranch_scc1 L_np1")
        k.opt = "prod0"
        for q in range(4):
            k(f"ds_read_b64 {v(240 + 2 * q, 2)}, v5 offset:{L_MRED + 512 * q}")
        k(f"s_lshr_b32 s{sA}, s{sSTRIP}, 3\ns_cmp_eq_u32 s{sA}, 1\ns_cselect_b32 s{sB}, 1.0, 0\ns_cmp_eq_u32 s{sA}, 4\ns_cselect_b32 s{sB}, 1.0, s{sB}")
        k("v_lshlrev_b32 v6, 2, v4\nv_lshrrev_b32 v7, 5, v0\nv_lshl_add_u32 v6, v7, 1, v6\nv_bfe_u32 v7, v0, 4, 1\nv_add_u32 v6, v6, v7\nv_lshlrev_b32 v6, 3, v6")
        k(f"s_lshl_b32 s{sA}, s{sSTRIP}, 8\ns_add_u32 s{sA}, s{sA}, {MODG}")
        k("v_pk_add_f32 v[240:241], v[240:241], v[242:243]\nv_pk_add_f32 v[244:245], v[244:245], v[246:247]\nv_pk_add_f32 v[240:241], v[240:241], v[244:245]")
        k("v_cvt_pk_bf16_f32 v240, v240, v241")
        self.unpack(242, 240, 1)
        k(f"v_add_f32 v242, s{sB}, v242\nv_add_f32 v243, s{sB}, v243\nv_cvt_pk_bf16_f32 v240, v242, v243\nv_mov_b32 v241, s{sT}")
        k("s_mov_b32 exec_lo, 0x00ff00ff\ns_mov_b32 exec_hi, 0x00ff00ff")
        k(f"buffer_store_dwordx2 v[240:241], v6, {srd(SWS)}, s{sA} offen sc1")
        k("s_mov_b64 exec, -1")
        k.opt = False
        k("L_np1:")
        self.stamp("strip")

    def wq_block(self, part, i, lds, tag):
        r = [Inst(f"s_add_u32 m0, s{sC_}, {lds}"),
             Inst(f"s_add_u32 s{sA}, s{sD}, {part * 1024 + i * 4 * 32 * 3072}")]
        for q in range(4):
            r.append(Inst(f"buffer_load_dwordx4 v{8 + q}, {srd(SWQ)}, s{sA} offen offset:{q * 1024} lds", tag))
        return r

    def p1_ln(self):
        k = self.k
        ONE = 0x3F803F80
        k(f"s_mov_b32 s{sB}, {hx(ONE)}")
        S, Q = 144, 160
        for r in range(16):
            x = 16 + 8 * r
            for q in range(4):
                k(f"v_dot2_f32_bf16 v{S + r}, v{x + 4 + q}, s{sB}, {'0' if q == 0 else 'v%d' % (S + r)}")
            for q in range(4):
                k(f"v_dot2_f32_bf16 v{Q + r}, v{x + 4 + q}, v{x + 4 + q}, {'0' if q == 0 else 'v%d' % (Q + r)}")
            self.unpack(x, x + 4, 4)
        for B in (S, Q):
            for r in range(8):
                k(f"v_permlane32_swap_b32 v{B + r}, v{B + r + 8}")
        for B in (S, Q):
            for r in range(8):
                k(f"v_add_f32 v{B + r}, v{B + r}, v{B + r + 8}")
        for B in (S, Q):
            for r in range(4):
                k(f"v_permlane16_swap_b32 v{B + r}, v{B + r + 4}")
        for B in (S, Q):
            for r in range(4):
                k(f"v_add_f32 v{B + r}, v{B + r}, v{B + r + 4}")
        for sh in (8, 4, 2, 1):
            for B in (S, Q):
                for r in range(4):
                    k(f"v_add_f32_dpp v{B + r}, v{B + r}, v{B + r} row_ror:{sh} row_mask:0xf bank_mask:0xf")
        T = 176
        k(f"s_mov_b32 s{sA}, {hx(f2u(1.0 / 512))}")
        for r in range(4):
            k(f"v_mul_f32 v{S + r}, s{sA}, v{S + r}")
        for r in range(4):
            k(f"v_mul_f32 v{T + r}, v{S + r}, v{S + r}")
        for r in range(4):
            k(f"v_fma_f32 v{Q + r}, v{Q + r}, s{sA}, -v{T + r}")
        for r in range(4):
            k(f"v_max_f32 v{Q + r}, 0, v{Q + r}")
        for r in range(4):
            k(f"v_add_f32 v{Q + r}, {hx(f2u(1e-5))}, v{Q + r}")
        for r in range(4):
            k(f"v_rsq_f32 v{T + r}, v{Q + r}")
        for r in range(4):
            k(f"v_mul_f32_e64 v{T + 4 + r}, -v{S + r}, v{T + r}")
        RS = lambda row, e: 144 + 2 * row + e
        for e in range(2):
            for r in range(4):
                k(f"v_mov_b32 v{RS(r, e)}, v{T + 4 * e + r}\nv_mov_b32 v{RS(r + 4, e)}, v{T + 4 * e + r}")
        for e in range(2):
            for r in range(4):
                k(f"v_permlane16_swap_b32 v{RS(r, e)}, v{RS(r + 4, e)}")
        for e in range(2):
            for r in range(8):
                k(f"v_mov_b32 v{RS(r + 8, e)}, v{RS(r, e)}")
        for e in range(2):
            for r in range(8):
                k(f"v_permlane32_swap_b32 v{RS(r, e)}, v{RS(r + 8, e)}")
        for r in range(16):
            x = 16 + 8 * r
            for q in range(4):
                k(f"v_pk_fma_f32 {v(x + 2 * q, 2)}, {v(x + 2 * q, 2)}, {v(RS(r, 0), 2)}, {v(RS(r, 0), 2)} op_sel:[0,0,1] op_sel_hi:[1,0,1]")
        self.stamp("lnprep")
        k(f"s_lshl_b32 s{sA}, s{sW}, 10\ns_add_u32 s{sF}, s{sA}, {MODG}")
        ld = f"buffer_load_dwordx4 v[144:147], v2, {srd(SWS)}, s{sF} offen sc1"
        k(ld)
        k(f"v_bfe_u32 v5, v0, 3, 2\nv_xor_b32 v5, s{sW}, v5\nv_lshlrev_b32 v5, 5, v5\nv_and_b32 v6, 3, v0\nv_lshl_add_u32 v5, v6, 3, v5")
        k("v_lshrrev_b32 v6, 4, v0\nv_lshl_add_u32 v5, v6, 10, v5\nv_bfe_u32 v6, v0, 2, 2\nv_lshl_add_u32 v12, v6, 7, v5")
        k(f"v_add_u32 v13, {L_S1}, v12\nv_add_u32 v12, {L_H}, v12")
        k.wait_vm("wk")
        k("s_barrier")
        for ks in range(16):
            for u in range(2):
                k(f"ds_read_b64_tr_b16 {v(176 + 4 * ks + 2 * u, 2)}, v12 offset:{ks * 4096 + u * 512}")
        k(f"s_getreg_b32 s{sA}, hwreg(HW_REG_XCC_ID, 0, 4)\nv_mov_b32 v148, s{sA}\nv_mov_b32 v149, s{sT}")
        k(f"v_cmp_eq_u32 vcc, 0, v0\nv_mov_b32 v14, {hx(OOB)}\nv_cndmask_b32 v14, v14, 0, vcc")
        k(f"s_lshl_b32 s{sA}, s2, 3\ns_add_u32 s{sA}, s{sA}, {ARR}\ns_cmp_eq_u32 s{sW}, 0\ns_cselect_b32 s{sA}, s{sA}, {hx(OOB)}")
        self.poll([ld], [145, 147])
        k(f"buffer_store_dwordx2 v[148:149], v14, {srd(SWS)}, s{sA} offen sc1")
        k(f"v_mov_b32 v145, v146\ns_lshl_b32 s{sA}, s{sW}, 9\nv_lshl_add_u32 v5, v0, 3, s{sA}")
        k(f"ds_write_b64 v5, v[144:145] offset:{L_MODB}")
        k.barrier()
        self.stamp("mod")
        k(f"ds_read_b128 v[144:147], v2 offset:{L_MODB}\nds_read_b128 v[148:151], v2 offset:{L_MODB + 1024}")
        k(f"s_lshl_b32 s{sA}, s{sW}, 14\ns_add_u32 s{sA}, s{sA}, {L_H}\nv_add_u32 v5, s{sA}, v2")
        self.unpack(240, 144, 4)
        self.unpack(248, 148, 4)
        for r in range(16):
            x = 16 + 8 * r
            for q in range(4):
                k(f"v_pk_fma_f32 {v(x + 2 * q, 2)}, {v(x + 2 * q, 2)}, {v(248 + 2 * q, 2)}, {v(240 + 2 * q, 2)}")
            k(f"v_xor_b32 v{6 + (r & 1)}, {r * 16}, v5")
            for q in range(4):
                k(f"v_cvt_pk_bf16_f32 v{x + q}, v{x + 2 * q}, v{x + 2 * q + 1}")
            k(f"ds_write_b128 v{6 + (r & 1)}, {v(x, 4)} offset:{r * 1024}")
        k(f"v_and_b32 v1, 15, v0\nv_lshrrev_b32 v3, 4, v0\nv_xor_b32 v3, v3, v1\nv_lshlrev_b32 v1, 10, v1\nv_lshl_add_u32 v4, v3, 4, v1\nv_add_u32 v4, {L_H}, v4")
        k.wait_vm("wv")
        k.barrier()
        k("v_xor_b32 v5, 64, v4\nv_xor_b32 v6, 128, v4\nv_xor_b32 v7, 192, v4")
        self.stamp("h")

    KL, VL, QF, KH = 176, 184, 200, 208
    VH = 192

    def hfrag(self, T, ks):
        return a_((ks * 4 + T) * 4, 4)

    def p1_gemm(self):
        k = self.k
        aK, aV, aQ = 144, 160, 240
        rd = [f"ds_read_b128 {self.hfrag(T, ks)}, v{4 + (ks & 3)} offset:{(ks >> 2) * 256 + T * 16384}" for ks in range(16) for T in range(4)]
        wv = [f"ds_read_b64_tr_b16 {v(16 + 4 * ks + 2 * u, 2)}, v13 offset:{ks * 4096 + u * 512}" for ks in range(16) for u in range(2)]
        PRE = 6
        for i in range(PRE):
            k(rd[i])
        for i in range(64):
            ks, T = i >> 2, i & 3
            k(f"{M16} {v(aK + 4 * T, 4)}, {v(176 + 4 * ks, 4)}, {self.hfrag(T, ks)}, {'0' if ks == 0 else v(aK + 4 * T, 4)}")
            if i + PRE < 64:
                k(rd[i + PRE])
            if i & 1:
                k(wv[i >> 1])
        k.wait_vm("wq1")
        k.barrier()
        self.stamp("kdone")
        bg = [self.wq_block(0, i, L_S1 + i * 16384, "wq2") for i in (2, 1, 0)]
        for atom in bg:
            for b in atom:
                k.add(b)
        for T in range(4):
            for p in range(2):
                k(f"v_cvt_pk_bf16_f32 v{self.KL + 2 * T + p}, v{aK + 4 * T + 2 * p}, v{aK + 4 * T + 2 * p + 1}")
        k(f"s_lshl_b32 s{sA}, s{sG}, 5\ns_add_u32 s{sF}, s{sA}, s{sHEAD}")
        k(f"s_lshl_b32 s{sA}, s{sF}, 11\ns_add_u32 s{sB}, s{sA}, {VB}\ns_add_u32 s{sA}, s{sA}, {KB}")
        for t in range(2):
            for p in range(2):
                k(f"v_permlane16_swap_b32 v{self.KL + 4 * t + p}, v{self.KL + 4 * t + 2 + p}")
        for t in range(2):
            k(f"buffer_store_dwordx4 {v(self.KL + 4 * t, 4)}, v2, {srd(SWS)}, s{sA} offen offset:{t * 1024} sc1", tag="kst")
        k(f"v_mov_b32 v15, s{sT}")
        k(f"s_lshl_b32 s{sF}, s{sF}, 7")
        for i in range(64):
            ks, T = i >> 2, i & 3
            k(f"{M16} {v(aV + 4 * T, 4)}, {self.hfrag(T, ks)}, {v(16 + 4 * ks, 4)}, {'0' if ks == 0 else v(aV + 4 * T, 4)}")
            if i == 44:
                k.wait_vm("kst")
                k(f"s_add_u32 s{sA}, s{sF}, {KFL}")
                k(f"buffer_store_dword v15, v14, {srd(SWS)}, s{sA} offen sc1")
        k(f"v_add_u32 v12, {L_S2 - L_H}, v12")
        for ks in (15, 14, 13, 12):
            for u in range(2):
                k(f"ds_read_b64_tr_b16 {v(80 + 4 * ks + 2 * u, 2)}, v12 offset:{(ks - 12) * 4096 + u * 512}")
        self.stamp("vdone")
        k(f"v_and_b32 v1, 15, v0\nv_lshrrev_b32 v3, 5, v0\nv_lshl_add_u32 v1, v3, 4, v1\nv_lshlrev_b32 v1, 4, v1")
        k(f"v_and_b32 v3, 16, v0\nv_lshl_add_u32 v1, v3, 20, v1")
        for T in range(4):
            f = self.VL + 4 * T
            for p in range(2):
                k(f"v_cvt_pk_bf16_f32 v{f + p}, v{aV + 4 * T + 2 * p}, v{aV + 4 * T + 2 * p + 1}")
                k(f"v_mov_b32 v{f + 2 + p}, 0x3f803f80")
        for T in range(4):
            for p in range(2):
                k(f"v_permlane16_swap_b32 v{self.VL + 4 * T + p}, v{self.VL + 4 * T + 2 + p}")
        for T in range(4):
            for p in range(2):
                k(f"v_permlane32_swap_b32 v{self.VL + 4 * T + p}, v{self.VL + 4 * T + 2 + p}")
        for T in range(4):
            k(f"buffer_store_dwordx4 {v(self.VL + 4 * T, 4)}, v1, {srd(SWS)}, s{sB} offen offset:{T * 512} sc1", tag="vst")
        k.wait_vm("wq2")
        k.barrier()
        wq = [f"ds_read_b64_tr_b16 {v(80 + 4 * ks + 2 * u, 2)}, v13 offset:{ks * 4096 + u * 512}" for ks in range(11, -1, -1) for u in range(2)]
        for i in range(64):
            ks, T = 15 - (i >> 2), i & 3
            k(f"{M16} {v(aQ + 4 * T, 4)}, {v(80 + 4 * ks, 4)}, {self.hfrag(T, ks)}, {'0' if ks == 15 else v(aQ + 4 * T, 4)}")
            if i < len(wq):
                k(wq[i])
            if i == 44:
                k.wait_vm("vst")
                k(f"s_add_u32 s{sA}, s{sF}, {VFL}")
                k(f"buffer_store_dword v15, v14, {srd(SWS)}, s{sA} offen sc1")
        k(f"s_mov_b32 s{sA}, {hx(f2u(0.25 * LOG2E))}")
        for r in range(16):
            k(f"v_mul_f32 v{aQ + r}, s{sA}, v{aQ + r}")
        for T in range(4):
            for p in range(2):
                k(f"v_cvt_pk_bf16_f32 v{self.QF + 2 * T + p}, v{aQ + 4 * T + 2 * p}, v{aQ + 4 * T + 2 * p + 1}")
        for t in range(2):
            for p in range(2):
                k(f"v_permlane16_swap_b32 v{self.QF + 4 * t + p}, v{self.QF + 4 * t + 2 + p}")
        self.stamp("qdone")


    def setup_rowdma(self):
        k = self.k
        k("v_lshrrev_b32 v3, 3, v0\nv_bfe_u32 v5, v0, 4, 1\nv_lshlrev_b32 v5, 2, v5\nv_and_b32 v6, 7, v0\nv_xor_b32 v5, v5, v6")
        k("v_lshlrev_b32 v5, 4, v5\nv_lshl_add_u32 v8, v3, 10, v5")
        k("v_add_u32 v9, 7168, v8\nv_add_u32 v10, 14336, v8\nv_add_u32 v11, 21504, v8")

    def rowdma(self, S, sbase, goff, slds, lds, tag, n=4):
        r = [Inst(f"s_add_u32 m0, s{slds}, {lds}"), Inst(f"s_add_u32 s{sA}, s{sbase}, {goff}")]
        for q in range(n):
            r.append(Inst(f"buffer_load_dwordx4 v{8 + q}, {srd(S)}, s{sA} offen offset:{q * 1024} lds", tag))
        return r

    def w1dma(self, ks, lds, tag):
        r = [Inst(f"s_add_u32 m0, s{self.sW3K}, {lds}"), Inst(f"s_add_u32 s{sA}, s{self.sW1B}, {ks * 32 * 2752}")]
        for cb in range(3):
            r.append(Inst(f"buffer_load_dwordx4 v{4 + cb}, {srd(SW1)}, s{sA} offen offset:{cb * 1024} lds", tag))
        return r

    def w1read(self, ks, off):
        return [Inst(f"ds_read_b64_tr_b16 {a_(64 + 12 * ks + 4 * f + 2 * u, 2)}, v{240 + f} offset:{off + u * 3072}") for f in range(3) for u in range(2)]

    sW1B, sW3K, sROWB, sW16K, sGX, sST16, sXCC, sW2B = 32, 33, 34, 35, 36, 37, 38, 39
    X1 = 16
    SA, SB, SM, NEGM, OA, PP, MB, OFA = 32, 48, 64, 80, 96, 112, 136, 144
    R_WO = POOL
    R_A = POOL + 65536
    R_X = POOL + 65536 + 73728
    RED = POOL + 65536 + 61440

    def p2_setup(self):
        k = self.k
        k(f"s_mul_i32 s{sA}, s{sJ}, 5\ns_min_u32 s{sB}, s{sJ}, 3\ns_add_u32 s{sA}, s{sA}, s{sB}\ns_lshl_b32 s{self.sST16}, s{sA}, 1")
        k(f"s_lshl_b32 s{sA}, s{self.sST16}, 5\ns_mul_i32 s{sB}, s{sW}, {8 * 2752}\ns_add_u32 s{sA}, s{sA}, s{sB}\ns_add_u32 s{self.sW1B}, s{sA}, {2048 - 1792}")
        k(f"s_sub_u32 s{SW1}, s{SW1}, 2048\ns_subb_u32 s{SW1 + 1}, s{SW1 + 1}, 0\ns_mov_b32 s{SW1 + 2}, {1409024 + 2048}")
        k(f"s_mul_i32 s{self.sW3K}, s{sW}, 3072\ns_lshl_b32 s{self.sW16K}, s{sW}, 14")
        k(f"s_lshl_b32 s{sA}, s{sW}, 17\ns_lshl_b32 s{sB}, s{sJ}, 7\ns_add_u32 s{self.sROWB}, s{sA}, s{sB}")
        k(f"s_mul_i32 s{sA}, s{sW}, {352 * 1024}\ns_add_u32 s{self.sW2B}, s{sA}, s{sB}")
        k(f"s_lshl_b32 s{self.sGX}, s{sG}, 1")
        k.barrier()
        self.setup_rowdma()
        k(f"v_and_b32 v3, 3, v0\nv_sub_u32 v3, s{sG}, v3\nv_add_u32 v3, -1, v3\nv_cmp_gt_i32 vcc, 0, v3\nv_mov_b32 v5, s{sG}\nv_cndmask_b32 v3, v3, v5, vcc\nv_lshlrev_b32 v3, 12, v3")
        k(f"s_lshl_b32 s{sA}, s{sHEAD}, 7\ns_add_u32 s{sF}, s{sA}, {KFL}\ns_add_u32 s{sD}, s{sA}, {VFL}")
        ldk = f"buffer_load_dword v5, v3, {srd(SWS)}, s{sF} offen sc1"
        k(ldk)
        k(f"v_and_b32 v6, 7, v0\nv_lshlrev_b32 v13, 2, v6\nv_lshlrev_b32 v6, 6, v6\ns_andn2_b32 s{sA}, s2, 0x38\ns_lshl_b32 s{sA}, s{sA}, 3\ns_add_u32 s{sC_}, s{sA}, {ARR}")
        lda = f"buffer_load_dwordx2 v[32:33], v6, {srd(SWS)}, s{sC_} offen sc1"
        k(lda)
        k(f"s_lshl_b32 s{sA}, s{sW}, 11\ns_add_u32 s{sB}, s{sA}, {MODG + 4096}")
        ldm = [f"buffer_load_dwordx4 {v(36 + 4 * q, 4)}, v2, {srd(SWS)}, s{sB} offen offset:{q * 1024} sc1" for q in range(2)]
        k("\n".join(ldm))
        for g in range(4):
            for b in self.rowdma(SWO, self.sROWB, g * 32768, self.sW16K, self.R_WO + g * 4096, "wo"):
                k.add(b)
        k("v_and_b32 v12, 31, v0\nv_lshrrev_b32 v7, 5, v0\nv_lshlrev_b32 v7, 2, v7\nv_sub_u32 v12, v12, v7")
        for r in range(16):
            k(f"v_cmp_le_i32 s[{SMASK + 2 * r}:{SMASK + 2 * r + 1}], {8 * (r >> 2) + (r & 3)}, v12")
        k(f"v_mov_b32 v7, 0xffff\nv_mov_b32 v12, s{sHI}")
        for p in range(8):
            k(f"v_cndmask_b32 v{self.MB + p}, 0, v7, s[{SMASK + 4 * p}:{SMASK + 4 * p + 1}]")
            k(f"v_cndmask_b32 v{self.PP + p}, 0, v12, s[{SMASK + 4 * p + 2}:{SMASK + 4 * p + 3}]")
        for p in range(8):
            k(f"v_or_b32 v{self.MB + p}, v{self.MB + p}, v{self.PP + p}")
        for m in range(4):
            k(f"s_cmp_ge_u32 s{sG}, {4 - m}\ns_cselect_b32 s{sA}, 0x3f803f80, 0\nv_mov_b32 v7, s{sA}")
            for r in range(16):
                k(f"v_accvgpr_write_b32 a{self.VH + 16 * m + r}, v7")
        self.poll([ldk], [5])
        self.stamp("kflag")
        k(f"s_lshl_b32 s{sA}, s{sG}, 5\ns_add_u32 s{sA}, s{sA}, s{sHEAD}\ns_lshl_b32 s{sE}, s{sA}, 11")
        for m in range(4):
            k(f"s_add_u32 s{sA}, s{sE}, {KB + (m - 4) * 65536}\ns_cmp_ge_u32 s{sG}, {4 - m}\ns_cselect_b32 s{sA}, s{sA}, {hx(OOB)}")
            for t in range(2):
                k(f"buffer_load_dwordx4 {v(self.KH + 8 * m + 4 * t, 4)}, v2, {srd(SWS)}, s{sA} offen offset:{t * 1024} sc1")
        ldv = f"buffer_load_dword v5, v3, {srd(SWS)}, s{sD} offen sc1"
        k(ldv)
        self.poll([lda], [33])
        k(f"s_getreg_b32 s{sA}, hwreg(HW_REG_XCC_ID, 0, 4)\nv_cmp_ne_u32 vcc, s{sA}, v32\ns_cmp_lg_u64 vcc, 0\ns_cselect_b32 s3, 1, 0")
        self.poll(ldm, [37, 39, 41, 43])
        k(f"v_mov_b32 v37, v38\nv_mov_b32 v41, v42\ns_lshl_b32 s{sA}, s{sW}, 10\nv_lshl_add_u32 v7, v0, 3, s{sA}")
        k(f"ds_write_b64 v7, v[36:37] offset:{L_MODB + 2048}\nds_write_b64 v7, v[40:41] offset:{L_MODB + 2048 + 512}")
        k(f"v_bfe_u32 v7, v0, 3, 1\ns_lshr_b32 s{sA}, s{sW}, 1\nv_xor_b32 v7, s{sA}, v7\nv_lshlrev_b32 v7, 6, v7")
        k(f"v_bfe_u32 v12, v0, 4, 1\ns_and_b32 s{sA}, s{sW}, 1\nv_xor_b32 v12, s{sA}, v12\nv_lshl_add_u32 v7, v12, 5, v7")
        k("v_and_b32 v12, 3, v0\nv_lshl_add_u32 v7, v12, 3, v7\nv_bfe_u32 v12, v0, 2, 2\nv_lshl_add_u32 v7, v12, 7, v7\nv_lshrrev_b32 v12, 5, v0")
        k(f"v_lshl_add_u32 v244, v12, 9, v7\nv_lshl_add_u32 v246, v12, 10, v7\ns_add_u32 s{sA}, s{self.sW16K}, {self.R_WO}\nv_add_u32 v244, s{sA}, v244\nv_xor_b32 v245, 64, v244")
        self.poll([ldv], [5])
        self.stamp("vflag")
        k("s_mov_b32 exec_lo, 0xffff\ns_mov_b32 exec_hi, 0xffff")
        for m in range(4):
            k(f"s_add_u32 s{sA}, s{sE}, {VB + (m - 4) * 65536}\ns_cmp_ge_u32 s{sG}, {4 - m}\ns_cselect_b32 s{sA}, s{sA}, {hx(OOB)}")
            for T in range(4):
                k(f"buffer_load_dwordx4 {a_(self.VH + 16 * m + 4 * T, 4)}, v1, {srd(SWS)}, s{sA} offen offset:{T * 512} sc1")
        k("s_mov_b64 exec, -1")
        k.wait_vm("wo")
        for s_ in range(8):
            for p in range(2):
                for u in range(2):
                    k(f"ds_read_b64_tr_b16 {a_((s_ * 2 + p) * 4 + 2 * u, 2)}, v{244 + p} offset:{(16 * s_ + 8 * u) * 128}")
        k("v_lshrrev_b32 v7, 3, v0\nv_lshrrev_b32 v12, 4, v0\nv_and_b32 v4, 7, v0\nv_xor_b32 v4, v4, v12\nv_lshlrev_b32 v4, 4, v4\nv_lshl_add_u32 v4, v7, 10, v4")
        k("v_xor_b32 v5, 64, v4\nv_add_u32 v5, 7168, v5")
        k(f"s_lshl_b32 s{sA}, s{sW}, 11\ns_add_u32 m0, s{sA}, {self.R_X}\ns_lshl_b32 s{sA}, s{sG}, 16\ns_add_u32 s{sA}, s{sA}, s{self.sW16K}\ns_lshl_b32 s{sB}, s{sJ}, 7\ns_add_u32 s{sA}, s{sA}, s{sB}")
        k(f"buffer_load_dwordx4 v4, {srd(SX)}, s{sA} offen lds\nbuffer_load_dwordx4 v5, {srd(SX)}, s{sA} offen offset:1024 lds", tag="xr")
        k("v_lshrrev_b32 v7, 3, v0\nv_mul_u32_u24 v7, 2752, v7\nv_bfe_u32 v12, v0, 1, 2\nv_lshrrev_b32 v4, 4, v0\nv_xor_b32 v12, v12, v4\nv_lshl_add_u32 v7, v12, 5, v7")
        k("v_and_b32 v12, 1, v0\nv_lshl_add_u32 v6, v12, 4, v7\nv_add_u32 v5, 896, v6\nv_add_u32 v4, 1792, v6")
        k("v_lshrrev_b32 v7, 5, v0\nv_mul_u32_u24 v7, 6144, v7\nv_bfe_u32 v12, v0, 2, 3\nv_lshl_add_u32 v7, v12, 7, v7\nv_and_b32 v12, 3, v0\nv_lshl_add_u32 v7, v12, 3, v7\nv_bfe_u32 v12, v0, 3, 2")
        for f in range(3):
            k(f"s_mul_i32 s{sA}, s{sW}, 3\ns_add_u32 s{sA}, s{sA}, {f}\ns_and_b32 s{sB}, s{sA}, 3\ns_lshr_b32 s{sA}, s{sA}, 2\ns_lshl_b32 s{sA}, s{sA}, 10\ns_add_u32 s{sA}, s{sA}, {self.R_A}")
            k(f"v_xor_b32 v{240 + f}, s{sB}, v12\nv_lshl_add_u32 v{240 + f}, v{240 + f}, 5, v7\nv_add_u32 v{240 + f}, s{sA}, v{240 + f}")
        self.touch_ws()
        self.pre_stamps = list(self.used_stamps)
        if self.force_slow:
            k("s_branch L_slowmode")
        else:
            k("s_cmp_lg_u32 s3, 0\ns_cbranch_scc1 L_slowmode")

    def touch_ws(self):
        k = self.k
        k("v_lshlrev_b32 v7, 7, v0\nv_min_u32 v12, 0x380, v7")
        for X in range(2):
            k(f"s_add_u32 s{sA}, s{self.sGX}, {X}\ns_lshl_b32 s{sB}, s{sA}, 5\ns_add_u32 s{sB}, s{sB}, s{sHEAD}\ns_lshl_b32 s{sB}, s{sB}, 10\ns_add_u32 s{sB}, s{sB}, {OB}")
            k(f"buffer_load_dword v248, v12, {srd(SWS)}, s{sB} offen", tag="touch")
            k(f"s_lshl_b32 s{sB}, s{sA}, 1\ns_and_b32 s{sC_}, s{sW}, 1\ns_add_u32 s{sB}, s{sB}, s{sC_}\ns_lshl_b32 s{sB}, s{sB}, 4\ns_lshr_b32 s{sC_}, s{sHEAD}, 1\ns_add_u32 s{sB}, s{sB}, s{sC_}\ns_lshl_b32 s{sB}, s{sB}, 10\ns_add_u32 s{sB}, s{sB}, {YB}")
            k(f"buffer_load_dword v249, v12, {srd(SWS)}, s{sB} offen", tag="touch")
        k("v_min_u32 v12, 0xb80, v7")
        for X in range(2):
            k(f"s_add_u32 s{sA}, s{self.sGX}, {X}\ns_mul_i32 s{sA}, s{sA}, 88\ns_mul_i32 s{sB}, s{sW}, 3\ns_add_u32 s{sA}, s{sA}, s{sB}\ns_add_u32 s{sA}, s{sA}, s{self.sST16}\ns_lshl_b32 s{sA}, s{sA}, 10\ns_add_u32 s{sA}, s{sA}, {HB}")
            k(f"buffer_load_dword v250, v12, {srd(SWS)}, s{sA} offen", tag="touch")
        k(f"v_lshrrev_b32 v7, 1, v0\nv_lshlrev_b32 v7, 13, v7\nv_and_b32 v12, 1, v0\nv_lshl_add_u32 v7, v12, 7, v7\ns_lshl_b32 s{sA}, s{sG}, 8\ns_add_u32 s{sA}, s{sA}, {OFL}\nv_add_u32 v7, s{sA}, v7")
        k(f"v_bfe_u32 v12, v0, 2, 1\nv_lshlrev_b32 v12, 12, v12\nv_and_b32 v251, 3, v0\nv_lshl_add_u32 v12, v251, 7, v12\ns_lshl_b32 s{sA}, s{sG}, 13\ns_lshl_b32 s{sB}, s{sJ}, 9\ns_add_u32 s{sA}, s{sA}, s{sB}\ns_add_u32 s{sA}, s{sA}, {STG}\nv_add_u32 v12, s{sA}, v12")
        k("v_cmp_gt_u32 vcc, 6, v0\nv_cndmask_b32 v7, v12, v7, vcc")
        k(f"buffer_load_dword v251, v7, {srd(SWS)}, 0 offen", tag="touch")

    def tiles(self, X):
        H = lambda n: (v(self.KH + 4 * n, 4), [a_(self.VH + 8 * n + 4 * s_, 4) for s_ in range(2)], n)
        L = lambda n: (v(self.KL + 4 * n, 4), [v(self.VL + 8 * n + 4 * s_, 4) for s_ in range(2)], None)
        if X == 0:
            return L(0), H(0), [H(n) for n in range(7, 0, -1)]
        return L(1), H(1), [L(0)] + [H(n) for n in range(7, 1, -1)]

    def skip_unless(self, n):
        k = self.k
        lab = k.lab("skip")
        k(f"s_cmp_lt_u32 s{self.sGX}, {8 - n}\ns_cbranch_scc1 {lab}")
        k.opt = lab
        return lab

    def attn_generic(self, X):
        k = self.k
        SA, SB, SM, NG, OA, PP, MB = self.SA, self.SB, self.SM, self.NEGM, self.OA, self.PP, self.MB
        Q = v(self.QF + 4 * X, 4)
        diag, old, full = self.tiles(X)
        m = NG
        k(f"{M32} {v(SA, 16)}, {diag[0]}, {Q}, 0\n{M32} {v(SB, 16)}, {old[0]}, {Q}, 0")
        lab = k.lab("old")
        k(f"s_cmp_ge_u32 s{self.sGX}, {8 - old[2]}\ns_cbranch_scc1 {lab}")
        k.opt = lab
        for r in range(16):
            k(f"v_mov_b32 v{SB + r}, 0xff800000")
        k.opt = False
        k(f"{lab}:")
        for r in range(16):
            k(f"v_cndmask_b32 v{SM + r}, v{SB + r}, v{SA + r}, s[{SMASK + 2 * r}:{SMASK + 2 * r + 1}]")
        k(f"v_max_f32 v{m}, v{SM}, v{SM + 1}")
        for r in range(2, 16, 2):
            k(f"v_max3_f32 v{m}, v{m}, v{SM + r}, v{SM + r + 1}")
        for i, t in enumerate(full):
            S = SA if i & 1 else SB
            lab = self.skip_unless(t[2]) if t[2] is not None else None
            k(f"{M32} {v(S, 16)}, {t[0]}, {Q}, 0")
            for r in range(0, 16, 2):
                k(f"v_max3_f32 v{m}, v{m}, v{S + r}, v{S + r + 1}")
            if lab:
                k.opt = False
                k(f"{lab}:")
        k(f"v_mov_b32 v{m + 1}, v{m}\nv_permlane32_swap_b32 v{m}, v{m + 1}\nv_max_f32 v{m}, v{m}, v{m + 1}\nv_sub_f32 v{m}, 0, v{m}")
        for r in range(1, 16):
            k(f"v_mov_b32 v{NG + r}, v{m}")
        for r in range(16):
            k(f"v_add_f32 v{SM + r}, v{SM + r}, v{m}")
        for r in range(16):
            k(f"v_exp_f32 v{SM + r}, v{SM + r}")
        for p in range(8):
            k(f"v_cvt_pk_bf16_f32 v{PP + p}, v{SM + 2 * p}, v{SM + 2 * p + 1}")
        for p in range(8):
            k(f"v_and_b32 v{PP + 8 + p}, v{PP + p}, v{MB + p}")
        for p in range(8):
            k(f"v_xor_b32 v{PP + p}, v{PP + p}, v{PP + 8 + p}")
        O = v(OA, 16)
        k(f"{M32} {O}, {diag[1][0]}, {v(PP + 8, 4)}, 0\n{M32} {O}, {diag[1][1]}, {v(PP + 12, 4)}, {O}")
        k(f"{M32} {O}, {old[1][0]}, {v(PP, 4)}, {O}\n{M32} {O}, {old[1][1]}, {v(PP + 4, 4)}, {O}")
        for i, t in enumerate(full):
            S = SA if i & 1 else SB
            P = PP + 16 if i & 1 else PP + 8
            lab = self.skip_unless(t[2]) if t[2] is not None else None
            k(f"{M32} {v(S, 16)}, {t[0]}, {Q}, {v(NG, 16)}")
            for r in range(16):
                k(f"v_exp_f32 v{S + r}, v{S + r}")
            for p in range(8):
                k(f"v_cvt_pk_bf16_f32 v{P + p}, v{S + 2 * p}, v{S + 2 * p + 1}")
            k(f"{M32} {O}, {t[1][0]}, {v(P, 4)}, {O}\n{M32} {O}, {t[1][1]}, {v(P + 4, 4)}, {O}")
            if lab:
                k.opt = False
                k(f"{lab}:")

    def attn_out(self, X, sc):
        k = self.k
        OA = self.OA
        k(f"s_add_u32 s{sA}, s{self.sGX}, {X}\ns_lshl_b32 s{sA}, s{sA}, 5\ns_add_u32 s{sA}, s{sA}, s{sHEAD}\ns_lshl_b32 s{sB}, s{sA}, 10\ns_add_u32 s{sB}, s{sB}, {OB}")
        k(f"v_rcp_f32 v{OA + 8}, v{OA + 8}")
        for r in range(8):
            k(f"v_mul_f32 v{OA + r}, v{OA + r}, v{OA + 8}")
        for p in range(4):
            k(f"v_cvt_pk_bf16_f32 v{OA + 12 + p}, v{OA + 2 * p}, v{OA + 2 * p + 1}")
        k(f"buffer_store_dwordx4 {v(OA + 12, 4)}, v2, {srd(SWS)}, s{sB} offen{sc}", tag=f"ost{X}")

    def flag_store(self, base, X, tag, sc):
        k = self.k
        k.wait_vm(tag)
        k(f"s_add_u32 s{sA}, s{self.sGX}, {X}\ns_lshl_b32 s{sA}, s{sA}, 5\ns_add_u32 s{sA}, s{sA}, s{sHEAD}\ns_lshl_b32 s{sA}, s{sA}, 2\ns_add_u32 s{sA}, s{sA}, {base}")
        k(f"buffer_store_dword v15, v14, {srd(SWS)}, s{sA} offen{sc}")

    def flag_load8(self, base, X, dst):
        k = self.k
        k(f"s_add_u32 s{sA}, s{self.sGX}, {X}\ns_lshl_b32 s{sA}, s{sA}, 2\ns_add_u32 s{sA}, s{sA}, s{sW}\ns_lshl_b32 s{sA}, s{sA}, 5\ns_add_u32 s{sF}, s{sA}, {base}")
        ld = f"buffer_load_dword v{dst}, v13, {srd(SWS)}, s{sF} offen sc1"
        k(ld)
        return ld

    ACC, GA, CB, RT, YP = 32, 64, 72, 80, 104

    def reduce_write(self, red):
        k = self.k
        for p in (2, 3, 1):
            r = self.ACC + 16 * (p >> 1) + 8 * (p & 1)
            for q in range(2):
                k(f"ds_write_b128 v{108 + p}, {v(r + 4 * q, 4)} offset:{(p - 1) * 2048 + q * 1024 + red - self.redbase}")

    def reduce_read(self, red):
        k = self.k
        for p in (1, 2, 3):
            for q in range(2):
                k(f"ds_read_b128 {v(self.RT + 8 * (p - 1) + 4 * q, 4)}, v108 offset:{(p - 1) * 2048 + q * 1024 + red - self.redbase}")
        A, R = self.ACC, self.RT
        for q in range(4):
            k(f"v_pk_add_f32 {v(A + 2 * q, 2)}, {v(A + 2 * q, 2)}, {v(R + 2 * q, 2)}")
        for q in range(4):
            k(f"v_pk_add_f32 {v(R + 8 + 2 * q, 2)}, {v(R + 8 + 2 * q, 2)}, {v(R + 16 + 2 * q, 2)}")
        for q in range(4):
            k(f"v_pk_add_f32 {v(A + 2 * q, 2)}, {v(A + 2 * q, 2)}, {v(R + 8 + 2 * q, 2)}")

    def colvec(self, vec, dst, tmp):
        self.k(f"ds_read2_b64 {v(tmp, 4)}, v12 offset0:{vec * 128} offset1:{vec * 128 + 2}") if vec < 2 else None
        if vec >= 2:
            self.k(f"ds_read_b64 {v(tmp, 2)}, v12 offset:{L_MODB + vec * 1024}\nds_read_b64 {v(tmp + 2, 2)}, v12 offset:{L_MODB + vec * 1024 + 16}")
        self.unpack(dst, tmp, 4)

    def w2round(self, steps, slot0=0):
        atoms = []
        for i in range(0, len(steps), 2):
            atoms.append(self.rowdma(SW2, self.sW2B, steps[i] * 16384, self.sW12K, self.R_A + (slot0 + i) * 2048, "w2"))
        return atoms

    def w2reg(self, s_, p):
        return (a_, (s_ * 2 + p) * 4) if s_ < 8 else (v, 144 + ((s_ - 8) * 2 + p) * 4)

    def w2reads(self, steps, slot0=0):
        r = []
        for i, s_ in enumerate(steps):
            for p in range(2):
                f, base = self.w2reg(s_, p)
                for u in range(2):
                    r.append(Inst(f"ds_read_b64_tr_b16 {f(base + 2 * u, 2)}, v{self.W2A + p} offset:{(slot0 + i) * 2048 + u * 512}"))
        return r

    sW12K = 40
    W2A = 140

    def p3_half(self, X, sc, ofr):
        k = self.k
        A = self.ACC
        for s_ in range(8):
            for p in range(2):
                k(f"{M32} {v(A + 16 * p, 16)}, {a_((s_ * 2 + p) * 4, 4)}, {v(ofr + 4 * s_, 4)}, {'0' if s_ == 0 else v(A + 16 * p, 16)}")
        self.reduce_write(self.RED)
        x = self.X1 + 8 * X
        self.unpack(x, x + 4, 4)
        k.barrier()
        self.stamp(f"p3r{X}")
        self.reduce_read(self.RED)
        for r in range(8):
            k(f"v_fmac_f32 v{x + r}, v{self.GA + r}, v{A + r}")
        for r in range(8):
            k(f"v_mul_f32 v{A + r}, v{self.CB + r}, v{x + r}")
        k(f"s_add_u32 s{sA}, s{self.sGX}, {X}\ns_lshl_b32 s{sA}, s{sA}, 15\ns_lshl_b32 s{sB}, s{sHEAD}, 9\ns_add_u32 s{sA}, s{sA}, s{sB}\ns_add_u32 s{sA}, s{sA}, {YB}")
        for p in range(4):
            k(f"v_cvt_pk_bf16_f32 v{self.YP + p}, v{A + 2 * p}, v{A + 2 * p + 1}")
        k(f"buffer_store_dwordx4 {v(self.YP, 4)}, v3, {srd(SWS)}, s{sA} offen{sc}", tag=f"yst{X}")
        k(f"v_add_f32 v{A + 8}, v{x}, v{x + 1}\nv_mul_f32 v{A + 9}, v{x}, v{x}\nv_fmac_f32 v{A + 9}, v{x + 1}, v{x + 1}")
        for r in range(2, 8):
            k(f"v_add_f32 v{A + 8}, v{A + 8}, v{x + r}\nv_fmac_f32 v{A + 9}, v{x + r}, v{x + r}")
        k(f"v_permlane32_swap_b32 v{A + 8}, v{A + 9}\nv_add_f32 v{A + 8}, v{A + 8}, v{A + 9}")
        k(f"ds_write_b32 v7, v{A + 8} offset:{L_STP}")
        k.barrier()
        for q in range(4):
            k(f"ds_read_b64 {v(A + 2 * q, 2)}, v6 offset:{L_STP + 256 * q}")
        k(f"s_add_u32 s{sA}, s{self.sGX}, {X}\ns_lshl_b32 s{sA}, s{sA}, 12\ns_lshl_b32 s{sB}, s{sJ}, 9\ns_add_u32 s{sA}, s{sA}, s{sB}\ns_add_u32 s{sA}, s{sA}, {STG}\ns_cmp_eq_u32 s{sW}, 0\ns_cselect_b32 s{sB}, s{sA}, {hx(OOB)}")
        k(f"v_pk_add_f32 {v(A, 2)}, {v(A, 2)}, {v(A + 2, 2)}\nv_pk_add_f32 {v(A + 4, 2)}, {v(A + 4, 2)}, {v(A + 6, 2)}\nv_pk_add_f32 {v(A, 2)}, {v(A, 2)}, {v(A + 4, 2)}")
        k(f"v_mov_b32 v{A + 2}, v15\nv_mov_b32 v{A + 3}, v15")
        k(f"buffer_store_dwordx4 {v(A, 4)}, v5, {srd(SWS)}, s{sB} offen{sc}")
        self.flag_store(YFL, X, f"yst{X}", sc)
        self.stamp(f"p3e{X}")

    def o_loads(self, X, ofr):
        k = self.k
        k(f"s_add_u32 s{sA}, s{self.sGX}, {X}\ns_lshl_b32 s{sA}, s{sA}, 2\ns_add_u32 s{sA}, s{sA}, s{sW}\ns_lshl_b32 s{sA}, s{sA}, 13\ns_add_u32 s{sA}, s{sA}, {OB}\ns_add_u32 s{sB}, s{sA}, 4096")
        for s_ in range(8):
            k(f"buffer_load_dwordx4 {v(ofr + 4 * s_, 4)}, v2, {srd(SWS)}, s{sA if s_ < 4 else sB} offen offset:{(s_ & 3) * 1024} sc1")

    CS, BI, FA, YBUF, STV, FT, PK = 32, 44, 56, 80, 96, 104, 128

    def csbias(self):
        k = self.k
        k("v_and_b32 v4, 1, v0\nv_lshlrev_b32 v4, 10, v4\nv_sub_u32 v4, 4096, v4\nv_lshrrev_b32 v5, 5, v0\nv_lshl_add_u32 v4, v5, 5, v4\nv_bfe_u32 v5, v0, 4, 1\nv_lshl_add_u32 v4, v5, 3, v4")
        rd = lambda ks: f"ds_read2_b64 {v(self.YBUF + 4 * (ks & 3), 4)}, v4 offset0:{ks * 8} offset1:{ks * 8 + 2}"
        for ks in range(3):
            k(rd(ks))
        for ks in range(16):
            if ks + 3 < 16:
                k(rd(ks + 3))
            for f in range(3):
                k(f"{M16} {v(self.FA + 4 * f, 4)}, {a_(64 + 12 * ks + 4 * f, 4)}, {v(self.YBUF + 4 * (ks & 3), 4)}, {'0' if ks == 0 else v(self.FA + 4 * f, 4)}")
        k(f"v_mov_b32 v5, {hx(f2u(-LOG2E))}")
        for r in range(12):
            k(f"v_mov_b32_dpp v{self.CS + r}, v{self.FA + r} quad_perm:[0,0,2,2] row_mask:0xf bank_mask:0xf")
            k(f"v_mul_f32_dpp v{self.BI + r}, v{self.FA + r}, v5 quad_perm:[1,1,3,3] row_mask:0xf bank_mask:0xf")

    def y_fetch(self, X):
        k = self.k
        ld = self.flag_load8(YFL, X, 4)
        self.poll([ld], [4])
        self.stamp(f"yflag{X}")
        k(f"s_add_u32 s{sA}, s{self.sGX}, {X}\ns_lshl_b32 s{sA}, s{sA}, 15\ns_lshl_b32 s{sB}, s{sW}, 12\ns_add_u32 s{sA}, s{sA}, s{sB}\ns_add_u32 s{sA}, s{sA}, {YB}")
        for tt in range(2):
            k(f"s_add_u32 m0, s{sB}, {self.R_WO + X * 32768 + tt * 16384}")
            if tt:
                k(f"s_add_u32 s{sA}, s{sA}, 16384")
            for q in range(4):
                k(f"buffer_load_dwordx4 v2, {srd(SWS)}, s{sA} offen offset:{q * 1024} sc1 lds", tag=f"y{X}")
        lab = k.lab("nost")
        k(f"s_cmp_lg_u32 s{sW}, 0\ns_cbranch_scc1 {lab}")
        k.opt = lab
        T = self.FT
        k(f"v_and_b32 v4, 31, v0\nv_lshlrev_b32 v5, 3, v4\nv_lshlrev_b32 v4, 4, v4\nv_lshrrev_b32 v{T}, 5, v0\nv_lshl_add_u32 v4, v{T}, 11, v4")
        k(f"s_add_u32 s{sA}, s{self.sGX}, {X}\ns_lshl_b32 s{sA}, s{sA}, 12\ns_add_u32 s{sF}, s{sA}, {STG}")
        lds_ = [f"buffer_load_dwordx4 {v(T + 4 * q, 4)}, v4, {srd(SWS)}, s{sF} offen offset:{q * 512} sc1" for q in range(4)]
        k("\n".join(lds_))
        self.poll(lds_, [T + 2, T + 6, T + 10, T + 14])
        k(f"v_pk_add_f32 {v(T, 2)}, {v(T, 2)}, {v(T + 4, 2)}\nv_pk_add_f32 {v(T + 8, 2)}, {v(T + 8, 2)}, {v(T + 12, 2)}\nv_pk_add_f32 {v(T, 2)}, {v(T, 2)}, {v(T + 8, 2)}")
        k(f"v_permlane32_swap_b32 v{T}, v{T + 1}\nv_add_f32 v{T}, v{T}, v{T + 1}\nv_mov_b32 v{T + 1}, v{T}\nv_permlane32_swap_b32 v{T}, v{T + 1}")
        k(f"s_mov_b32 s{sA}, {hx(f2u(1.0 / 512))}\nv_mul_f32 v{T}, s{sA}, v{T}\nv_mul_f32 v{T + 2}, v{T}, v{T}\nv_fma_f32 v{T + 1}, v{T + 1}, s{sA}, -v{T + 2}")
        k(f"v_max_f32 v{T + 1}, 0, v{T + 1}\nv_add_f32 v{T + 1}, {hx(f2u(1e-5))}, v{T + 1}\nv_rsq_f32 v{T + 1}, v{T + 1}\nv_mul_f32 v{T + 1}, {hx(f2u(-LOG2E))}, v{T + 1}")
        k(f"ds_write_b64 v5, {v(T, 2)} offset:{L_ST + X * 256}")
        k.drain_lgkm()
        k.opt = False
        k(f"{lab}:")

    def p4_mfma(self, X, tt):
        k = self.k
        acc = self.FA + 12 * tt
        rd = lambda ks: f"ds_read_b128 {v(self.YBUF + 4 * (ks & 3), 4)}, v6 offset:{X * 32768 + tt * 16384 + ks * 1024}"
        for ks in range(3):
            k(rd(ks))
        for ks in range(16):
            if ks + 3 < 16:
                k(rd(ks + 3))
            for f in range(3):
                k(f"{M16} {v(acc + 4 * f, 4)}, {a_(64 + 12 * ks + 4 * f, 4)}, {v(self.YBUF + 4 * (ks & 3), 4)}, {'0' if ks == 0 else v(acc + 4 * f, 4)}")

    def p4_epi(self, X, tt):
        k = self.k
        acc, T = self.FA + 12 * tt, self.FT
        mu, rs = self.STV + 4 * X + 2 * tt, self.STV + 4 * X + 2 * tt + 1
        for r in range(12):
            k(f"v_fma_f32 v{acc + r}, -v{mu}, v{self.CS + r}, v{acc + r}")
        for r in range(12):
            k(f"v_fma_f32 v{acc + r}, v{acc + r}, v{rs}, v{self.BI + r}")
        for r in range(12):
            k(f"v_exp_f32 v{T + r}, v{acc + r}")
        for r in range(12):
            k(f"v_add_f32 v{T + r}, 1.0, v{T + r}")
        for r in range(12):
            k(f"v_rcp_f32 v{T + r}, v{T + r}")
        for r in range(12):
            k(f"v_mul_f32 v{T + r}, v{T + r}, v{acc + r}")
        for f in range(3):
            for p in range(2):
                k(f"v_cvt_pk_bf16_f32 v{self.PK + 4 * f + 2 * tt + p}, v{T + 4 * f + 2 * p}, v{T + 4 * f + 2 * p + 1}")

    def p4_store(self, X, sc):
        k = self.k
        k(f"s_add_u32 s{sA}, s{self.sGX}, {X}\ns_mul_i32 s{sA}, s{sA}, 88\ns_mul_i32 s{sB}, s{sW}, 3\ns_add_u32 s{sA}, s{sA}, s{sB}\ns_add_u32 s{sA}, s{sA}, s{self.sST16}\ns_lshl_b32 s{sA}, s{sA}, 10\ns_add_u32 s{sA}, s{sA}, {HB}")
        k(f"s_cmp_ge_u32 s{sJ}, 3\ns_cselect_b32 s{sB}, s{sW}, 0\ns_cmp_eq_u32 s{sB}, 3\ns_cselect_b32 s{sB}, {hx(OOB)}, s{sA}")
        for f in range(3):
            for p in range(2):
                k(f"v_permlane16_swap_b32 v{self.PK + 4 * f + p}, v{self.PK + 4 * f + 2 + p}")
        for f in range(3):
            k(f"buffer_store_dwordx4 {v(self.PK + 4 * f, 4)}, v2, {srd(SWS)}, s{sA if f == 0 else sB} offen offset:{f * 1024}{sc}", tag=f"hst{X}")

    def p5_fetch(self, X):
        k = self.k
        k(f"s_add_u32 s{sA}, s{self.sGX}, {X}\ns_lshl_b32 s{sA}, s{sA}, 7\ns_add_u32 s{sF}, s{sA}, {HFL}")
        ld = f"buffer_load_dword v4, v13, {srd(SWS)}, s{sF} offen sc1"
        k(ld)
        self.poll([ld], [4])
        self.stamp(f"hflag{X}")
        k(f"s_add_u32 s{sA}, s{self.sGX}, {X}\ns_mul_i32 s{sA}, s{sA}, 88\ns_mul_i32 s{sB}, s{sW}, 22\ns_add_u32 s{sA}, s{sA}, s{sB}\ns_lshl_b32 s{sA}, s{sA}, 10\ns_add_u32 s{sA}, s{sA}, {HB}")
        for s_ in range(22):
            if s_ == 20:
                k(f"s_cmp_eq_u32 s{sW}, 3\ns_cselect_b32 s{sA}, {hx(OOB)}, s{sA}")
            k(f"buffer_load_dwordx4 {a_(64 + 88 * X + 4 * s_, 4)}, v2, {srd(SWS)}, s{sA} offen offset:{(s_ & 3) * 1024} sc1")
            if s_ & 3 == 3:
                k(f"s_add_u32 s{sA}, s{sA}, 4096")

    def p5_half(self, X):
        k = self.k
        A = self.ACC
        for s_ in range(22):
            for p in range(2):
                f, base = self.w2reg(s_, p)
                k(f"{M32} {v(A + 16 * p, 16)}, {f(base, 4)}, {a_(64 + 88 * X + 4 * s_, 4)}, {'0' if s_ == 0 else v(A + 16 * p, 16)}")
        red = self.redbase + X * 24576
        self.reduce_write(red)
        k.barrier()
        self.stamp(f"p5r{X}")
        self.reduce_read(red)
        x = self.X1 + 8 * X
        for r in range(8):
            k(f"v_fmac_f32 v{x + r}, v{self.GA + r}, v{A + r}")
        k(f"s_add_u32 s{sA}, s{self.sGX}, {X}\ns_lshl_b32 s{sA}, s{sA}, 15\ns_lshl_b32 s{sB}, s{sHEAD}, 5\ns_add_u32 s{sA}, s{sA}, s{sB}")
        for p in range(4):
            k(f"v_cvt_pk_bf16_f32 v{self.YP + p}, v{x + 2 * p}, v{x + 2 * p + 1}")
        k(f"v_permlane32_swap_b32 v{self.YP}, v{self.YP + 2}\nv_permlane32_swap_b32 v{self.YP + 1}, v{self.YP + 3}")
        k(f"buffer_store_dwordx4 {v(self.YP, 4)}, v3, {srd(SOUT)}, s{sA} offen")

    def epoch(self):
        k = self.k
        lab = k.lab("noep")
        k(f"s_lshl_b32 s{sA}, s2, 2\ns_add_u32 s{sA}, s{sA}, s{sW}\ns_cmp_lg_u32 s{sA}, 3\ns_cbranch_scc1 {lab}")
        k.opt = lab
        k(f"s_mov_b32 s{sF}, {ARR}")
        lds_ = [f"buffer_load_dwordx4 {v(self.SA + 4 * q, 4)}, v2, {srd(SWS)}, s{sF} offen offset:{q * 1024} sc1" for q in range(2)]
        k("\n".join(lds_))
        self.poll(lds_, [self.SA + 1, self.SA + 3, self.SA + 5, self.SA + 7])
        k(f"buffer_store_dword v15, v14, {srd(SWS)}, 0 offen sc1")
        k.opt = False
        k(f"{lab}:")

    def post(self, slow):
        k = self.k
        sc = " sc1" if slow else ""
        emit = lambda l: [k.add(i) for i in l]
        self.epoch()
        self.stamp("attn")
        fg = self.capture(lambda: self.attn_generic(0))
        bg = [self.w1dma(ks, self.R_A + ks * 12288, "w1a") for ks in range(6)]
        fg, rest = merge(fg, bg, 300)
        emit(fg)
        for b in rest:
            emit(b)
        self.attn_out(0, sc)
        k.wait_vm("w1a", "xr")
        k.barrier()
        self.stamp("attnA")
        for ks in range(6):
            emit(self.w1read(ks, (ks % 5) * 12288 if ks < 5 else 61440))
        k(f"v_and_b32 v7, 31, v0\nv_bfe_u32 v12, v0, 1, 3\ns_lshl_b32 s{sA}, s{sW}, 1\nv_xor_b32 v12, s{sA}, v12\nv_lshlrev_b32 v7, 7, v7\nv_lshl_add_u32 v7, v12, 4, v7")
        k(f"v_lshrrev_b32 v12, 5, v0\nv_lshl_add_u32 v7, v12, 3, v7\nv_add_u32 v7, {self.R_X}, v7\nv_xor_b32 v12, 16, v7")
        for X in range(2):
            k(f"ds_read_b64 {v(self.X1 + 8 * X + 4, 2)}, v7 offset:{X * 4096}\nds_read_b64 {v(self.X1 + 8 * X + 6, 2)}, v12 offset:{X * 4096}")
        self.flag_store(OFL, 0, "ost0", sc)
        fg = self.capture(lambda: self.attn_generic(1))
        bg = [self.w1dma(ks, self.R_WO + (ks - 6) * 12288, "w1b") for ks in range(6, 11)]
        fg, rest = merge(fg, bg, 300)
        emit(fg)
        for b in rest:
            emit(b)
        ld = self.flag_load8(OFL, 0, 7)
        self.attn_out(1, sc)
        self.poll([ld], [7])
        self.o_loads(0, self.OFA)
        k.wait_vm("w1b")
        k.barrier()
        self.stamp("attnB")
        for f in range(3):
            k(f"v_add_u32 v{240 + f}, {self.R_WO - self.R_A}, v{240 + f}")
        for ks in range(6, 11):
            emit(self.w1read(ks, (ks - 6) * 12288))
        self.flag_store(OFL, 1, "ost1", sc)
        for ks in range(11, 16):
            emit(self.w1dma(ks, self.R_A + (ks - 11) * 12288, "w1c"))
        self.redbase = self.RED
        k(f"s_mul_i32 s{sA}, s{sW}, 6144\ns_add_u32 s{sA}, s{sA}, {self.RED}\nv_add_u32 v108, s{sA}, v2")
        k(f"v_lshrrev_b32 v4, 5, v0\ns_lshl_b32 s{sA}, s{sHEAD}, 5\nv_lshl_add_u32 v12, v4, 3, s{sA}")
        self.colvec(2, self.GA, self.RT)
        self.colvec(4, self.CB, self.RT + 4)
        k("v_bfe_u32 v3, v0, 4, 1\nv_lshlrev_b32 v3, 14, v3\nv_and_b32 v5, 15, v0\nv_lshl_add_u32 v3, v5, 4, v3\nv_lshl_add_u32 v3, v4, 8, v3")
        k(f"v_and_b32 v5, 31, v0\nv_lshlrev_b32 v6, 3, v5\nv_lshl_add_u32 v7, v4, 2, v6\ns_lshl_b32 s{sA}, s{sW}, 8\nv_add_u32 v7, s{sA}, v7\nv_lshlrev_b32 v5, 4, v5\nv_lshl_add_u32 v5, v4, 24, v5")
        self.p3_half_w(0, sc, self.OFA)
        ld = self.flag_load8(OFL, 1, 4)
        self.poll([ld], [4])
        self.o_loads(1, 112)
        k.wait_vm("w1c")
        self.p3_half_w(1, sc, 112)
        for f in range(3):
            k(f"v_add_u32 v{240 + f}, {self.R_A - self.R_WO}, v{240 + f}")
        for ks in range(11, 16):
            emit(self.w1read(ks, (ks - 11) * 12288))
        k(f"s_mul_i32 s{self.sW12K}, s{sW}, 12288\ns_add_u32 s{sA}, s{self.sW12K}, {self.R_A}\nv_add_u32 v{self.W2A}, s{sA}, v246\nv_xor_b32 v{self.W2A + 1}, 64, v{self.W2A}")
        self.y_fetch(0)
        k.wait_vm("y0")
        k.barrier()
        self.csbias()
        k(f"v_add_u32 v6, {self.R_WO}, v2\nv_and_b32 v7, 15, v0\nv_lshlrev_b32 v7, 3, v7")
        for tt in range(2):
            k(f"ds_read_b64 {v(self.STV + 2 * tt, 2)}, v7 offset:{L_ST + tt * 128}")
        rounds = [list(range(16, 22)), list(range(10, 16)), [8, 9, 0, 1, 2, 3], [4, 5, 6, 7]]
        def w2_round(n):
            st = rounds[n]
            k.drain_lgkm()
            for at in self.w2round(st):
                emit(at)
        def w2_take(n):
            k.wait_vm("w2")
            emit(self.w2reads(rounds[n]))
        self.stamp("p4s")
        w2_round(0)
        self.p4_mfma(0, 0)
        w2_take(0)
        self.p4_epi(0, 0)
        w2_round(1)
        self.p4_mfma(0, 1)
        w2_take(1)
        self.p4_epi(0, 1)
        self.p4_store(0, sc)
        self.y_fetch(1)
        self.flag_store(HFL, 0, "hst0", sc)
        k.wait_vm("y1")
        k.barrier()
        for tt in range(2):
            k(f"ds_read_b64 {v(self.STV + 4 + 2 * tt, 2)}, v7 offset:{L_ST + 256 + tt * 128}")
        w2_round(2)
        self.p4_mfma(1, 0)
        w2_take(2)
        self.p4_epi(1, 0)
        w2_round(3)
        self.p4_mfma(1, 1)
        w2_take(3)
        self.p4_epi(1, 1)
        self.p4_store(1, sc)
        self.stamp("p4e")
        k("v_and_b32 v13, 31, v0\nv_lshlrev_b32 v13, 2, v13")
        self.p5_fetch(0)
        self.flag_store(HFL, 1, "hst1", sc)
        self.colvec(5, self.GA, self.RT)
        k(f"s_mov_b32 s{sA}, {hx(f2u(-0.6931471805599453))}")
        for r in range(8):
            k(f"v_mul_f32 v{self.GA + r}, s{sA}, v{self.GA + r}")
        k("v_and_b32 v3, 31, v0\nv_lshlrev_b32 v3, 10, v3\nv_lshrrev_b32 v4, 5, v0\nv_lshl_add_u32 v3, v4, 4, v3")
        k.barrier()
        self.redbase = self.R_WO
        k(f"s_mul_i32 s{sA}, s{sW}, 6144\ns_add_u32 s{sA}, s{sA}, {self.R_WO}\nv_add_u32 v108, s{sA}, v2")
        self.p5_fetch(1)
        self.p5_half_w(0)
        self.p5_half_w(1)
        self.stamp("done")

    def _redaddr(self):
        k = self.k
        for p in (1, 2, 3):
            k(f"s_xor_b32 s{sA}, s{sW}, {p}\ns_mul_i32 s{sA}, s{sA}, 6144\ns_add_u32 s{sA}, s{sA}, {self.redbase}\nv_add_u32 v{108 + p}, s{sA}, v2")

    def p3_half_w(self, X, sc, ofr):
        if X == 0:
            self._redaddr()
        self.p3_half(X, sc, ofr)

    def p5_half_w(self, X):
        if X == 0:
            self._redaddr()
        self.p5_half(X)

    def finish(self):
        k = self.k
        if getattr(self, 'spin', 0):
            pass
        elif self.used_stamps and self.dbg:
            k.drain_lgkm()
            k(f"s_mov_b32 s{SX}, s{SC_DBG}\ns_mov_b32 s{SX + 1}, s{SC_DBG + 1}\ns_mov_b32 s{SX + 2}, 256\nv_cmp_eq_u32 vcc, 0, v0\nv_mov_b32 v5, 0x1000\nv_cndmask_b32 v5, v5, 0, vcc")
            k(f"s_not_b32 s{sA}, s{self.slots[0]}\nv_mov_b32 v6, s{sA}\nbuffer_atomic_umax v6, v5, {srd(SX)}, 0 offen")
            for n in range(len(self.used_stamps)):
                k(f"v_mov_b32 v{16 + n}, s{self.slots[n]}\nbuffer_atomic_umax v{16 + n}, v5, {srd(SX)}, 0 offen offset:{4 + 4 * n}")
        elif self.used_stamps:
            k.drain_lgkm()
            k(f"s_lshl_b32 s{sA}, s2, 2\ns_add_u32 s{sA}, s{sA}, s{sW}\ns_lshl_b32 s{sA}, s{sA}, 8\ns_add_u32 s{sA}, s{sA}, {DBG}")
            k("v_mov_b32 v5, 0")
            for n in range(len(self.used_stamps)):
                k(f"v_mov_b32 v6, s{self.slots[n]}\nbuffer_store_dword v6, v5, {srd(SWS)}, s{sA} offen offset:{4 * n}")
            k(f"s_memrealtime s[86:87]\ns_waitcnt lgkmcnt(0)\nv_mov_b32 v6, s86\nbuffer_store_dword v6, v5, {srd(SWS)}, s{sA} offen offset:64")
        if getattr(self, "spin", 0):
            lab = k.lab("spin")
            k(f"s_waitcnt vmcnt(0) lgkmcnt(0)\n{lab}:\ns_memrealtime s[88:89]\ns_waitcnt lgkmcnt(0)\ns_sub_u32 s88, s88, s86\ns_cmp_lt_u32 s88, {self.spin}\ns_cbranch_scc1 {lab}")
        k("s_endpgm")

    def dump_regs(self, first, n, slot):
        k = self.k
        k(f"s_lshl_b32 s{sA}, s2, 2\ns_add_u32 s{sA}, s{sA}, s{sW}\ns_lshl_b32 s{sA}, s{sA}, 14\ns_add_u32 s{sA}, s{sA}, {slot * 256}")
        k(f"s_mov_b32 s[{SWS + 2}:{SWS + 2}], 0x8000000".replace(f"s[{SWS + 2}:{SWS + 2}]", f"s{SWS + 2}"))
        k(f"s_add_u32 s{sA}, s{sA}, 0x2000000\nv_lshlrev_b32 v5, 2, v0")
        for i in range(n):
            k(f"buffer_store_dword v{first + i}, v5, {srd(SWS)}, s{sA} offen offset:{i * 256}")
        k(f"s_waitcnt vmcnt(0)\ns_mov_b32 s{SWS + 2}, {hx(WSZ)}")

    def build(self):
        k = self.k
        self.p0()
        self.p1_ln()
        self.p1_gemm()
        self.p2_setup()
        k.alt_begin()
        self.post(False)
        self.finish()
        k("L_fastend:")
        k.alt_end()
        k("L_slowmode:")
        st, self.stamps = self.stamps, (self.stamps if self.force_slow else [])
        if self.force_slow:
            self.used_stamps = [x for x in self.used_stamps if x in self.pre_stamps]
        self.post(True)
        self.finish()
        k("L_end:\ns_endpgm")
        k.finalize()
        return self.wrap(k.text())

    def wrap(self, body):
        head = open("adaLN_cond__sliding_block__dense_activation_silu__prompt.s.ref").read().split("; Override launch")[0]
        return f"""{head}; @launch grid=(256,1,1) block=(256,1,1) lds={LDS_BYTES}
.amdgcn_target "amdgcn-amd-amdhsa--gfx950"
.text
.globl {NAME}
.p2align 8
.type {NAME},@function
{NAME}:
{body}
.section .rodata,"a"
.p2align 6
.amdhsa_kernel {NAME}
  .amdhsa_next_free_vgpr 512
  .amdhsa_next_free_sgpr 102
  .amdhsa_accum_offset 256
  .amdhsa_group_segment_fixed_size 0
  .amdhsa_kernarg_size 88
  .amdhsa_user_sgpr_count 2
  .amdhsa_user_sgpr_kernarg_segment_ptr 1
  .amdhsa_system_sgpr_workgroup_id_x 1
  .amdhsa_float_denorm_mode_32 3
.end_amdhsa_kernel
"""


if __name__ == "__main__":
    import argparse
    ap = argparse.ArgumentParser()
    ap.add_argument("-o", default="out.s")
    ap.add_argument("--upto", type=int, default=99)
    ap.add_argument("--stamps", default="")
    ap.add_argument("--slow", action="store_true")
    ap.add_argument("--dbg", action="store_true")
    ap.add_argument("--spin", type=int, default=0)
    a = ap.parse_args()
    g = Gen(a.upto, [s for s in a.stamps.split(",") if s], a.slow, a.dbg)
    g.spin = a.spin
    txt = g.build()
    open(a.o, "w").write(txt)
    print("instructions:", sum(1 for i in g.k.final if i.states), "hazard nops:", g.k.nops, file=sys.stderr)
    for m, t in g.k.timeline():
        print(f"  {m:10s} {t}", file=sys.stderr)
```
